```python
import torch

def _softmax(x, axis=-1):
    return torch.softmax(x, dim=axis)
def _gelu(x):
    return torch.nn.functional.gelu(x, approximate="tanh")
def _silu(x):
    return torch.nn.functional.silu(x)
def _sigmoid(x):
    return torch.sigmoid(x)
def _layernorm(x, axis=-1, eps=1e-5):
    m = x.mean(dim=axis, keepdim=True)
    v = x.var(dim=axis, keepdim=True, unbiased=False)
    return (x - m) / torch.sqrt(v + eps)
def _scatter_add(tgt, idx, src, axis=0):
    return tgt.clone().index_add_(axis, idx, src)
def _segment_sum(src, seg, n):
    out = torch.zeros((n,) + src.shape[1:], dtype=src.dtype)
    return out.index_add_(0, seg, src)
def _pad(x, pw):
    flat = tuple(v for pair in reversed(pw) for v in pair)
    return torch.nn.functional.pad(x, flat)

kernel_name = 'gated_mix__ssm_conv_h3__dense_activation_relu__prompt'

def setup_inputs():

    _w = (lambda a: (lambda t: t.to(torch.bfloat16) if t.is_floating_point() else t)(torch.as_tensor(a)))
    def _A_setup():
        B, S, D = 1, 2048, 512
        ks = 4
        return {
            "q": _w((lambda *s: torch.randn(*s, dtype=torch.bfloat16) * 0.05)(B, S, D)),
            "k": _w((lambda *s: torch.randn(*s, dtype=torch.bfloat16) * 0.8)(B, S, D)),
            "v": _w((lambda *s: torch.randn(*s, dtype=torch.bfloat16) * 0.8)(B, S, D)),
            "shift_k": _w((lambda *s: torch.randn(*s, dtype=torch.bfloat16) * 0.8)(D, ks) * 0.5),
            "ssm_k": _w((lambda *s: torch.randn(*s, dtype=torch.bfloat16) * 0.8)(D, S) * (1.0 / S ** 0.5)),
            "ssm_D": _w((lambda *s: torch.randn(*s, dtype=torch.bfloat16) * 0.8)(D)),
        }
    _A_in = _A_setup()

    def _B_setup():
        B, S, D, Dff = 1, 2048, 512, 1792
        return {
            "x": _w((lambda *s: torch.randn(*s, dtype=torch.bfloat16) * 0.05)(B, S, D)),
            "w1": _w((lambda *s: torch.randn(*s, dtype=torch.bfloat16) * 0.05)(D, Dff)),
            "w2": _w((lambda *s: torch.randn(*s, dtype=torch.bfloat16) * 0.05)(Dff, D)),
        }
    _B_in = _B_setup()

    return {
        "A_q": _A_in["q"],
        "A_k": _A_in["k"],
        "A_v": _A_in["v"],
        "A_shift_k": _A_in["shift_k"],
        "A_ssm_k": _A_in["ssm_k"],
        "A_ssm_D": _A_in["ssm_D"],
        "B_x": _B_in["x"],
        "B_w1": _B_in["w1"],
        "B_w2": _B_in["w2"],
        "gate_w": _w((lambda *s: torch.randn(*s, dtype=torch.bfloat16) * 0.05)(512) * 16.0),
    }

def reference(A_q, A_k, A_v, A_shift_k, A_ssm_k, A_ssm_D, B_x, B_w1, B_w2, gate_w):
    def _A_ref(q, k, v, shift_k, ssm_k, ssm_D):
        B, S, D = q.shape
        ks = shift_k.shape[-1]
        k_pad = _pad(k, ((0, 0), (ks - 1, 0), (0, 0)))
        k_shift = torch.zeros_like(k)
        for t in range(ks):
            k_shift = k_shift + k_pad[:, t:t + S, :] * shift_k[:, ks - 1 - t][None, None, :]
        kv = k_shift * v
        L = 2 * S
        kv_pad = _pad(kv, ((0, 0), (0, S), (0, 0)))
        kf_pad = _pad(ssm_k, ((0, 0), (0, S)))
        kv_f = (lambda x, axes=(-2,-1): torch.fft.rfft2(x.float(), dim=axes))(kv_pad[:, None, :, :], axes=(1, 2))
        kf_f = (lambda x, axes=(-2,-1): torch.fft.rfft2(x.float(), dim=axes))(kf_pad[:, None, :], axes=(1, 2))
        kf_f = (lambda x, *d: x.permute(*d))(kf_f, 1, 2, 0)
        y_f = kv_f * kf_f[None, :, :, :]
        y = (lambda x, s, axes=(-2,-1): torch.fft.irfft2(x, s=s, dim=axes).to(torch.bfloat16))(y_f, (1, L), axes=(1, 2))[:, 0, :S, :]
        y = y + kv * ssm_D[None, None, :]
        return q * y

    def _B_ref(x, w1, w2):
        h = torch.einsum("bsd,df->bsf", x, w1)
        zero = torch.zeros_like(h)
        h = torch.maximum(h, zero)
        return torch.einsum("bsf,fd->bsd", h, w2)

    x = A_q
    g = _sigmoid((x * gate_w).sum(-1, keepdims=True))
    a = _A_ref(x, A_k, A_v, A_shift_k, A_ssm_k, A_ssm_D)
    b = _B_ref(x, B_w1, B_w2)
    return g * a + (1 - g) * b
```

```python
class Asm:
    def __init__(self):
        self.lines = []
        self.lab = 0
    def __call__(self, s, *a):
        for ln in s.strip("\n").split("\n"):
            self.lines.append("    " + ln.strip())
    def label(self, name):
        self.lines.append(name + ":")
    def newlabel(self, p="L"):
        self.lab += 1
        return f"{p}_{self.lab}"
    def comment(self, s):
        self.lines.append("    ; " + s)
    def text(self):
        return "\n".join(self.lines) + "\n"

def v(i, n=1):
    return f"v{i}" if n == 1 else f"v[{i}:{i+n-1}]"
def s(i, n=1):
    return f"s{i}" if n == 1 else f"s[{i}:{i+n-1}]"
```

```python
from asmlib import *

H_OFF  = 0
UT_OFF = 8 << 20
Y2_OFF = 10 << 20
G_OFF  = 12 << 20
WS_SZ  = 16 << 20
MB2 = 2048*512*2

P = dict(q=64, k=66, v=68, shk=70, ssmk=72, ssmD=74, x=76, w1=78, w2=80, gw=82, out=84, dbg=86, ws=88)

def prologue_ptrs(a):
    a("""s_load_dwordx16 s[64:79], s[0:1], 0
         s_load_dwordx8 s[80:87], s[0:1], 64
         s_load_dwordx2 s[88:89], s[0:1], 96""")

def srd(a, d, name, size):
    a(f"""s_mov_b32 s{d}, s{P[name]}
          s_and_b32 s{d+1}, s{P[name]+1}, 0xffff
          s_mov_b32 s{d+2}, {size}
          s_mov_b32 s{d+3}, 0x00020000""")

SRD_Q, SRD_K, SRD_V, SRD_SHK, SRD_X, SRD_W1, SRD_GW, SRD_WS = 4, 8, 12, 16, 20, 24, 28, 32

def emit_u_gate_loads(a, sW, sID):
    a(f"""
    v_and_b32 v1, 63, v0                 ; lane
    v_lshrrev_b32 v2, 5, v1              ; sg
    v_and_b32 v6, 31, v1                 ; cp
    s_lshr_b32 s36, s{sID}, 3            ; sb
    s_and_b32 s37, s{sID}, 7             ; db
    s_lshl_b32 s36, s36, 6               ; 64*sb
    s_lshl_b32 s38, s{sW}, 4             ; 16*w
    s_add_u32 s36, s36, s38              ; 64sb+16w
    v_lshlrev_b32 v2, 3, v2              ; 8*sg
    v_add_u32 v3, s36, v2                ; srow
    s_lshl_b32 s37, s37, 6               ; 64 db
    v_lshlrev_b32 v6, 1, v6              ; 2cp
    v_add_u32 v6, s37, v6                ; d
    v_lshlrev_b32 v4, 10, v3             ; srow*1024
    v_lshl_add_u32 v4, v6, 1, v4         ; + d*2
    v_subrev_u32 v5, 3072, v4
    v_cmp_eq_u32 vcc, 0, v3
    v_mov_b32 v7, 0x80000000
    s_nop 1
    v_cndmask_b32 v5, v5, v7, vcc
    s_movk_i32 s39, 0x1000
    s_movk_i32 s40, 0x2000
    buffer_load_dword v16, v5, s[{SRD_K}:{SRD_K+3}], 0 offen
    buffer_load_dword v17, v5, s[{SRD_K}:{SRD_K+3}], 0 offen offset:1024
    buffer_load_dword v18, v5, s[{SRD_K}:{SRD_K+3}], 0 offen offset:2048
    """)
    for r in range(8):
        so = "0" if r < 4 else "s39"
        a(f"buffer_load_dword v{19+r}, v4, s[{SRD_K}:{SRD_K+3}], {so} offen offset:{(r&3)*1024}")
    for r in range(8):
        so = "0" if r < 4 else "s39"
        a(f"buffer_load_dword v{27+r}, v4, s[{SRD_V}:{SRD_V+3}], {so} offen offset:{(r&3)*1024}")
    a(f"""
    v_lshlrev_b32 v8, 3, v6              ; d*8
    buffer_load_dwordx4 v[36:39], v8, s[{SRD_SHK}:{SRD_SHK+3}], 0 offen
    s_lshl_b32 s41, s{sID}, 3            ; 8*id
    s_lshl_b32 s42, s{sW}, 1
    s_add_u32 s41, s41, s42
    s_lshl_b32 s42, s41, 10              ; row*1024
    v_lshlrev_b32 v9, 4, v1              ; lane*16
    buffer_load_dwordx4 v[40:43], v9, s[{SRD_Q}:{SRD_Q+3}], s42 offen
    buffer_load_dwordx4 v[44:47], v9, s[{SRD_Q}:{SRD_Q+3}], s42 offen offset:1024
    buffer_load_dwordx4 v[48:51], v9, s[{SRD_GW}:{SRD_GW+3}], 0 offen
    """)
    return 11 + 8 + 1 + 3

def emit_u_gate_compute(a, sc=""):
    for r in range(11):
        a(f"v_lshlrev_b32 v{52+2*r}, 16, v{16+r}")
        a(f"v_and_b32 v{53+2*r}, 0xffff0000, v{16+r}")
    for r in range(8):
        a(f"v_lshlrev_b32 v{74+2*r}, 16, v{27+r}")
        a(f"v_and_b32 v{75+2*r}, 0xffff0000, v{27+r}")
    a("""v_lshlrev_b32 v90, 16, v36
         v_lshlrev_b32 v91, 16, v38
         v_and_b32 v92, 0xffff0000, v36
         v_and_b32 v93, 0xffff0000, v38
         v_lshlrev_b32 v94, 16, v37
         v_lshlrev_b32 v95, 16, v39
         v_and_b32 v96, 0xffff0000, v37
         v_and_b32 v97, 0xffff0000, v39""")
    for r in range(8):
        d = 98 + 2*r
        K = lambda i: f"v[{52+2*i}:{53+2*i}]"
        a(f"v_pk_mul_f32 v[{d}:{d+1}], {K(r)}, v[96:97]")
        a(f"v_pk_fma_f32 v[{d}:{d+1}], {K(r+1)}, v[94:95], v[{d}:{d+1}]")
        a(f"v_pk_fma_f32 v[{d}:{d+1}], {K(r+2)}, v[92:93], v[{d}:{d+1}]")
        a(f"v_pk_fma_f32 v[{d}:{d+1}], {K(r+3)}, v[90:91], v[{d}:{d+1}]")
    for r in range(8):
        d = 98 + 2*r
        a(f"v_cvt_pk_bf16_f32 v2, v{d}, v{d+1}")
        a(f"v_lshlrev_b32 v{d}, 16, v2")
        a(f"v_and_b32 v{d+1}, 0xffff0000, v2")
        a(f"v_pk_mul_f32 v[{d}:{d+1}], v[{d}:{d+1}], v[{74+2*r}:{75+2*r}]")
    for j in range(4):
        a(f"v_cvt_pk_bf16_f32 v{116+j}, v{98+4*j}, v{100+4*j}")
        a(f"v_cvt_pk_bf16_f32 v{120+j}, v{99+4*j}, v{101+4*j}")
    a(f"""
    v_lshlrev_b32 v2, 12, v6             ; d*4096
    v_lshl_add_u32 v2, v3, 1, v2         ; + srow*2
    s_mov_b32 s43, {UT_OFF}
    s_mov_b32 s44, {UT_OFF+4096}
    buffer_store_dwordx4 v[116:119], v2, s[{SRD_WS}:{SRD_WS+3}], s43 offen {sc}
    buffer_store_dwordx4 v[120:123], v2, s[{SRD_WS}:{SRD_WS+3}], s44 offen {sc}
    """)
    a("""
    v_mov_b32 v10, 0
    v_mov_b32 v11, 0
    v_dot2_f32_bf16 v10, v40, v48, v10
    v_dot2_f32_bf16 v11, v44, v48, v11
    v_dot2_f32_bf16 v10, v41, v49, v10
    v_dot2_f32_bf16 v11, v45, v49, v11
    v_dot2_f32_bf16 v10, v42, v50, v10
    v_dot2_f32_bf16 v11, v46, v50, v11
    v_dot2_f32_bf16 v10, v43, v51, v10
    v_dot2_f32_bf16 v11, v47, v51, v11
    s_nop 4
    """)
    for dpp in ["row_shr:1 row_mask:0xf bank_mask:0xf bound_ctrl:0",
                "row_shr:2 row_mask:0xf bank_mask:0xf bound_ctrl:0",
                "row_shr:4 row_mask:0xf bank_mask:0xf bound_ctrl:0",
                "row_shr:8 row_mask:0xf bank_mask:0xf bound_ctrl:0",
                "row_bcast:15 row_mask:0xa bank_mask:0xf",
                "row_bcast:31 row_mask:0xc bank_mask:0xf"]:
        a(f"v_add_f32_dpp v10, v10, v10 {dpp}")
        a(f"v_add_f32_dpp v11, v11, v11 {dpp}")
        a("s_nop 1")
    a(f"""
    v_readlane_b32 s45, v10, 63
    v_readlane_b32 s46, v11, 63
    s_nop 3
    v_mov_b32 v10, s45
    v_mov_b32 v11, s46
    v_cvt_pk_bf16_f32 v10, v10, v11
    v_lshlrev_b32 v12, 16, v10
    v_and_b32 v13, 0xffff0000, v10
    v_mul_f32 v12, 0xbfb8aa3b, v12       ; -x*log2e
    v_mul_f32 v13, 0xbfb8aa3b, v13
    v_exp_f32 v12, v12
    v_exp_f32 v13, v13
    s_nop 0
    v_add_f32 v12, 1.0, v12
    v_add_f32 v13, 1.0, v13
    v_rcp_f32 v12, v12
    v_rcp_f32 v13, v13
    s_nop 0
    v_cvt_pk_bf16_f32 v10, v12, v13
    v_lshlrev_b32 v12, 16, v10
    v_and_b32 v13, 0xffff0000, v10
    s_lshl_b32 s42, s41, 2               ; row*4
    s_add_u32 s42, s42, {G_OFF}
    v_mov_b32 v14, 0
    v_cmp_eq_u32 vcc, 0, v1
    s_and_saveexec_b64 s[46:47], vcc
    buffer_store_dwordx2 v[12:13], v14, s[{SRD_WS}:{SRD_WS+3}], s42 offen {sc}
    s_mov_b64 exec, s[46:47]
    """)
    return 3

ACC = 128
FR  = 192
XA  = 224
WA  = 232
VX, VW = 236, 237

def g1_setup(a, sW, nslots, slot_bytes=32768):
    a(f"""
    v_lshrrev_b32 v2, 3, v1              ; i>>3
    s_lshl_b32 s53, s{sW}, 3
    v_add_u32 v2, s53, v2                ; 8w + (i>>3)
    v_lshlrev_b32 v2, 10, v2
    v_lshrrev_b32 v3, 4, v1              ; i>>4
    s_and_b32 s53, s{sW}, 1
    s_lshl_b32 s53, s53, 2
    v_add_u32 v4, s53, v3                ; 4(w&1) + (i>>4)
    v_and_b32 v5, 7, v1
    v_xor_b32 v5, v5, v4
    v_lshl_add_u32 v{VX}, v5, 4, v2
    v_mul_u32_u24 v2, 3584, v3
    v_and_b32 v5, 15, v1
    v_lshlrev_b32 v4, 2, v3
    v_xor_b32 v5, v5, v4
    v_lshl_add_u32 v{VW}, v5, 4, v2
    v_and_b32 v2, 31, v1
    v_lshlrev_b32 v2, 7, v2              ; (l&31)*128
    s_lshl_b32 s53, s51, 13              ; wr*64*128
    v_add_u32 v2, s53, v2
    v_lshrrev_b32 v3, 5, v1              ; hi
    v_bfe_u32 v4, v1, 1, 3               ; (l>>1)&7
    v_xor_b32 v4, v3, v4
    v_lshl_add_u32 v2, v4, 4, v2
    """)
    for ks in range(4):
        a(f"v_xor_b32 v{XA+2*ks}, {ks*32}, v2")
        a(f"v_add_u32 v{XA+2*ks+1}, 0x10000, v{XA+2*ks}")
    a(f"""
    v_bfe_u32 v4, v1, 2, 2               ; r
    v_and_b32 v5, 3, v1                  ; c
    v_bfe_u32 v6, v1, 4, 1               ; fhalf
    v_lshl_add_u32 v7, v3, 3, v4         ; 8hi + r
    v_lshlrev_b32 v7, 8, v7              ; *256
    v_add_u32 v7, 16384, v7
    v_and_b32 v8, 1, v5
    v_lshl_add_u32 v7, v8, 3, v7         ; + (c&1)*8
    v_lshrrev_b32 v8, 1, v5              ; c>>1
    v_lshl_add_u32 v8, v6, 1, v8         ; 2fhalf + (c>>1)
    s_lshl_b32 s53, s52, 3               ; 8wc
    v_add_u32 v8, s53, v8                ; p0 (ft=0)
    v_lshlrev_b32 v9, 2, v4              ; r<<2
    v_xor_b32 v10, v8, v9
    v_lshl_add_u32 v{WA}, v10, 4, v7
    v_add_u32 v8, 4, v8
    v_xor_b32 v10, v8, v9
    v_lshl_add_u32 v{WA+2}, v10, 4, v7
    v_add_u32 v{WA+1}, 0x10000, v{WA}
    v_add_u32 v{WA+3}, 0x10000, v{WA+2}
    """)

def g1_issue(a, c, slot):
    for t in range(4):
        a(f"s_add_u32 m0, s50, {slot*32768 + t*4096}")
        a(f"s_add_u32 s54, s48, {t*32768 + c*128}")
        a(f"buffer_load_dwordx4 v{VX}, s[{SRD_X}:{SRD_X+3}], s54 offen lds")
    for t in range(4):
        a(f"s_add_u32 m0, s50, {slot*32768 + 16384 + t*4096}")
        a(f"s_add_u32 s54, s49, {c*229376 + t*57344}")
        a(f"buffer_load_dwordx4 v{VW}, s[{SRD_W1}:{SRD_W1+3}], s54 offen lds")

def g1_reads(a, slot, ks, buf):
    base = slot*32768
    h = 1 if base >= 65536 else 0
    base -= h*65536
    f = FR + 16*buf
    for st in range(2):
        a(f"ds_read_b128 v[{f+4*st}:{f+4*st+3}], v{XA+2*ks+h} offset:{base+st*4096}")
    for ft in range(2):
        for kk in range(2):
            r = f + 8 + 4*ft + 2*kk
            a(f"ds_read_b64_tr_b16 v[{r}:{r+1}], v{WA+2*ft+h} offset:{base+ks*4096+kk*1024}")

def g1_mfma(a, buf, first):
    f = FR + 16*buf
    for ft in range(2):
        for st in range(2):
            ac = ACC + 16*(2*ft+st)
            c = "0" if first else f"v[{ac}:{ac+15}]"
            a(f"v_mfma_f32_32x32x16_bf16 v[{ac}:{ac+15}], v[{f+8+4*ft}:{f+8+4*ft+3}], v[{f+4*st}:{f+4*st+3}], {c}")

def g1_main(a, extra_after_dma, sc=""):
    NS = 4
    q = []
    for c in range(4): q += [c]*8
    q += ['x']*extra_after_dma
    def wait_for(c):
        last = max(i for i, t in enumerate(q) if t == c)
        return len(q) - 1 - last
    a(f"s_waitcnt vmcnt({wait_for(0)})")
    a("s_barrier")
    g1_reads(a, 0, 0, 0)
    buf = 0
    for c in range(8):
        for ks in range(4):
            if ks < 3:
                g1_reads(a, c % NS, ks+1, buf ^ 1)
                a("s_waitcnt lgkmcnt(6)")
            else:
                if c < 7:
                    a(f"s_waitcnt vmcnt({wait_for(c+1)}) lgkmcnt(0)")
                    a("s_barrier")
                    if c + 4 < 8:
                        g1_issue(a, c+4, c % NS); q += [c+4]*8
                    g1_reads(a, (c+1) % NS, 0, buf ^ 1)
                else:
                    a("s_waitcnt lgkmcnt(0)")
            g1_mfma(a, buf, c == 0 and ks == 0)
            buf ^= 1
    a("s_nop 15")
    a(f"""
    v_and_b32 v2, 31, v1
    s_lshl_b32 s53, s51, 6               ; 64 wr
    s_add_u32 s53, s53, s55              ; + s0
    v_add_u32 v2, s53, v2                ; row
    v_mul_u32_u24 v2, 3584, v2
    v_lshrrev_b32 v3, 5, v1
    v_lshl_add_u32 v2, v3, 4, v2         ; + hi*16
    s_lshl_b32 s53, s52, 7
    s_add_u32 s53, s53, s56              ; + f0*2
    s_add_u32 s53, s53, {H_OFF}
    s_add_u32 s57, s53, {32*3584}
    """)
    for ft in range(2):
        for st in range(2):
            ac = ACC + 16*(2*ft+st)
            for qp in range(2):
                t = FR + 4*((2*(2*ft+st)+qp) % 8)
                b = ac + 8*qp
                for j in range(8):
                    a(f"v_max_f32 v{b+j}, 0, v{b+j}")
                for j in range(4):
                    a(f"v_cvt_pk_bf16_f32 v{t+j}, v{b+2*j}, v{b+2*j+1}")
                a("s_nop 1")
                a(f"v_permlane32_swap_b32 v{t}, v{t+2}")
                a(f"v_permlane32_swap_b32 v{t+1}, v{t+3}")
                so = "s53" if st == 0 else "s57"
                a(f"buffer_store_dwordx4 v[{t}:{t+3}], v2, s[{SRD_WS}:{SRD_WS+3}], {so} offen offset:{ft*64+qp*32} {sc}")

def gen_k1(a):
    a.label("k1_kernel")
    a("s_cmp_ge_u32 s2, 256")
    a("s_cbranch_scc1 K1_END")
    prologue_ptrs(a)
    a("""v_lshrrev_b32 v1, 6, v0
         s_nop 0
         v_readfirstlane_b32 s3, v1
         s_waitcnt lgkmcnt(0)""")
    srd(a, SRD_Q, 'q', MB2); srd(a, SRD_K, 'k', MB2); srd(a, SRD_V, 'v', MB2)
    srd(a, SRD_SHK, 'shk', 4096); srd(a, SRD_X, 'q', MB2); srd(a, SRD_W1, 'w1', 512*1792*2)
    srd(a, SRD_GW, 'gw', 1024); srd(a, SRD_WS, 'ws', WS_SZ)
    n = emit_u_gate_loads(a, 3, 2)
    a("""
    s_and_b32 s58, s2, 7                 ; xcd
    s_lshr_b32 s59, s2, 3                ; idx
    s_cmp_ge_u32 s59, 28
    s_cbranch_scc1 K1_NOG1
    s_mul_i32 s60, s59, 37
    s_lshr_b32 s60, s60, 8
    s_mul_i32 s61, s60, 7
    s_sub_u32 s61, s59, s61              ; idx%7
    s_lshr_b32 s62, s58, 1
    s_lshl_b32 s62, s62, 2
    s_add_u32 s60, s60, s62              ; rb
    s_and_b32 s62, s58, 1
    s_mul_i32 s62, s62, 7
    s_add_u32 s61, s61, s62              ; cb
    s_lshl_b32 s55, s60, 7               ; s0
    s_lshl_b32 s56, s61, 8               ; f0*2
    s_lshl_b32 s48, s55, 10              ; s0*1024
    s_mul_i32 s49, s3, 14336
    s_add_u32 s49, s49, s56
    s_lshl_b32 s50, s3, 10
    s_lshr_b32 s51, s3, 1                ; wr
    s_and_b32 s52, s3, 1                 ; wc
    """)
    a("v_mov_b32 v15, v3")
    a("v_mov_b32 v124, v3\n v_mov_b32 v125, v6")
    g1_setup(a, 3, 4)
    a("v_mov_b32 v3, v124\n v_mov_b32 v6, v125")
    for c in range(4): g1_issue(a, c, c)
    a("s_waitcnt vmcnt(32)")
    ns = emit_u_gate_compute(a)
    g1_main(a, ns)
    a("s_endpgm")
    a.label("K1_NOG1")
    a("s_waitcnt vmcnt(0)")
    emit_u_gate_compute(a)
    a.label("K1_END")
    a("s_endpgm")
```

```python
from asmlib import *
from gen_k1 import *

S2_H, S2_W2, S2_Q, S2_OUT, S2_WS, S2_DBG, S2_SK, S2_SD = 4, 8, 12, 16, 20, 24, 28, 32

G2ACC = 64
G2FR  = 128
G2HA  = 160
G2WA  = 162
G2VH, G2VW = 166, 167
NSL = 5

def g2_issue(a, c, slot, ldflag=""):
    for t in range(2):
        a(f"s_add_u32 m0, s50, {slot*16384 + t*4096}")
        a(f"s_add_u32 s54, s48, {t*32*3584 + c*128}")
        a(f"buffer_load_dwordx4 v{G2VH}, s[{S2_H}:{S2_H+3}], s54 offen lds {ldflag}")
    for t in range(2):
        a(f"s_add_u32 m0, s50, {slot*16384 + 8192 + t*4096}")
        a(f"s_add_u32 s54, s49, {(c*64 + 32*t)*1024}")
        a(f"buffer_load_dwordx4 v{G2VW}, s[{S2_W2}:{S2_W2+3}], s54 offen lds")

def g2_reads(a, slot, buf):
    base = slot*16384
    h = 1 if base >= 65536 else 0
    base -= h*65536
    f = G2FR + 16*buf
    for st in range(2):
        a(f"ds_read_b128 v[{f+4*st}:{f+4*st+3}], v{G2HA+h} offset:{base+st*4096}")
    for dt in range(2):
        for kk in range(2):
            r = f + 8 + 4*dt + 2*kk
            a(f"ds_read_b64_tr_b16 v[{r}:{r+1}], v{G2WA+2*dt+h} offset:{base+kk*512}")

def g2_mfma(a, buf, first):
    f = G2FR + 16*buf
    for dt in range(2):
        for st in range(2):
            ac = G2ACC + 16*(2*dt+st)
            c = "0" if first else f"v[{ac}:{ac+15}]"
            a(f"v_mfma_f32_32x32x16_bf16 v[{ac}:{ac+15}], v[{f+8+4*dt}:{f+8+4*dt+3}], v[{f+4*st}:{f+4*st+3}], {c}")

PART_PITCH = 272
PART_SZ = 64*PART_PITCH
Y2L = 4*PART_SZ
Y2PITCH = 144

def gen_g2(a, hsc=""):
    a(f"""
    s_and_b32 s58, s2, 7
    s_lshr_b32 s59, s2, 3
    s_lshr_b32 s60, s59, 3
    s_lshl_b32 s61, s58, 2
    s_add_u32 s60, s60, s61              ; rb
    s_and_b32 s61, s59, 7                ; cb
    s_lshl_b32 s55, s60, 6               ; s0
    s_lshl_b32 s56, s61, 7               ; d0*2
    s_mul_i32 s48, s55, 3584
    s_mov_b32 s49, s56
    s_lshl_b32 s50, s3, 10
    v_and_b32 v1, 63, v0
    v_lshrrev_b32 v2, 3, v1
    s_lshl_b32 s53, s3, 3
    v_add_u32 v2, s53, v2                ; 8w + (i>>3)
    v_lshrrev_b32 v3, 4, v1              ; i>>4
    s_and_b32 s53, s3, 1
    s_lshl_b32 s53, s53, 2
    v_add_u32 v4, s53, v3
    v_and_b32 v5, 7, v1
    v_xor_b32 v6, v5, v4
    v_mul_u32_u24 v7, 3584, v2
    v_lshl_add_u32 v{G2VH}, v6, 4, v7
    v_and_b32 v4, 1, v3
    v_lshlrev_b32 v4, 2, v4
    v_xor_b32 v6, v5, v4
    v_lshlrev_b32 v7, 10, v2
    v_lshl_add_u32 v{G2VW}, v6, 4, v7
    """)
    for c in range(4): g2_issue(a, c, c, hsc)
    a(f"""
    v_and_b32 v2, 31, v1
    v_lshlrev_b32 v2, 7, v2
    v_lshrrev_b32 v3, 5, v1              ; hi
    s_lshl_b32 s53, s3, 1
    v_add_u32 v4, s53, v3                ; p = 2w+hi
    v_bfe_u32 v5, v1, 1, 3
    v_xor_b32 v4, v4, v5
    v_lshl_add_u32 v{G2HA}, v4, 4, v2
    v_add_u32 v{G2HA+1}, 0x10000, v{G2HA}
    v_bfe_u32 v4, v1, 2, 2               ; r
    v_and_b32 v5, 3, v1                  ; c
    v_bfe_u32 v6, v1, 4, 1               ; dhalf
    v_lshl_add_u32 v7, v3, 3, v4         ; 8hi + r
    s_lshl_b32 s53, s3, 4
    v_add_u32 v7, s53, v7                ; k = 16w+8hi+r
    v_lshlrev_b32 v7, 7, v7
    v_add_u32 v7, 8192, v7
    v_and_b32 v8, 1, v5
    v_lshl_add_u32 v7, v8, 3, v7
    v_lshrrev_b32 v8, 1, v5
    v_lshl_add_u32 v8, v6, 1, v8         ; 2dhalf + (c>>1)
    v_lshrrev_b32 v9, 1, v4
    v_lshlrev_b32 v9, 2, v9              ; (r>>1)<<2
    v_xor_b32 v10, v8, v9
    v_lshl_add_u32 v{G2WA}, v10, 4, v7
    v_xor_b32 v10, 4, v10
    v_lshl_add_u32 v{G2WA+2}, v10, 4, v7
    v_add_u32 v{G2WA+1}, 0x10000, v{G2WA}
    v_add_u32 v{G2WA+3}, 0x10000, v{G2WA+2}
    v_and_b32 v11, 15, v1
    s_lshl_b32 s53, s3, 4
    v_add_u32 v11, s53, v11              ; s local
    v_add_u32 v12, s55, v11              ; s global
    v_lshrrev_b32 v13, 4, v1             ; gq
    v_lshlrev_b32 v14, 10, v12
    v_lshl_add_u32 v14, v13, 4, v14      ; s*1024 + gq*16
    v_lshlrev_b32 v15, 2, v12
    s_mov_b32 s57, {G_OFF}
    buffer_load_dwordx4 v[16:19], v14, s[{S2_Q}:{S2_Q+3}], s56 offen
    buffer_load_dwordx4 v[20:23], v14, s[{S2_Q}:{S2_Q+3}], s56 offen offset:64
    buffer_load_dword v24, v15, s[{S2_WS}:{S2_WS+3}], s57 offen {hsc}
    """)
    q = []
    for c in range(4): q += [c]*4
    q += ['x']*3
    def wait_for(c):
        last = max(i for i, t in enumerate(q) if t == c)
        return len(q) - 1 - last
    NC = 28
    for c in range(NC):
        a(f"s_waitcnt vmcnt({wait_for(c)}) lgkmcnt(0)")
        a("s_barrier")
        if c + 4 < NC:
            g2_issue(a, c+4, (c+4) % NSL, hsc); q += [c+4]*4
        g2_reads(a, c % NSL, c & 1)
        if c > 0: g2_mfma(a, (c-1) & 1, c == 1)
    a("s_waitcnt lgkmcnt(0)")
    a("s_barrier")
    g2_mfma(a, (NC-1) & 1, False)
    lp = a.newlabel("G2POLL"); dn = a.newlabel("G2GO")
    a(f"""
    s_lshl_b32 s53, s61, 2
    v_mov_b32 v25, s53
    s_mov_b32 s62, 0
    """)
    a.label(lp)
    a(f"""
    buffer_load_dword v26, v25, s[{S2_DBG}:{S2_DBG+3}], 0 offen sc1
    s_waitcnt vmcnt(0)
    v_readfirstlane_b32 s63, v26
    s_add_u32 s62, s62, 1
    s_cmp_ge_u32 s63, 32
    s_cbranch_scc1 {dn}
    s_cmp_ge_u32 s62, 0x40000
    s_cbranch_scc1 {dn}
    s_sleep 2
    s_branch {lp}
    """)
    a.label(dn)
    a(f"""
    v_lshrrev_b32 v2, 3, v0
    v_and_b32 v3, 7, v0
    v_lshlrev_b32 v4, 12, v2             ; row*4096
    v_lshl_add_u32 v4, v3, 4, v4
    s_lshl_b32 s53, s56, 11              ; d0*4096 = (d0*2)*2048
    s_lshl_b32 s62, s55, 1
    s_add_u32 s53, s53, s62
    s_add_u32 s53, s53, {Y2_OFF}
    s_add_u32 s62, s53, {32*4096}
    buffer_load_dwordx4 v[28:31], v4, s[{S2_WS}:{S2_WS+3}], s53 offen sc1
    buffer_load_dwordx4 v[32:35], v4, s[{S2_WS}:{S2_WS+3}], s62 offen sc1
    v_mul_u32_u24 v5, {Y2PITCH}, v2
    v_lshl_add_u32 v5, v3, 4, v5
    v_add_u32 v5, {Y2L}, v5
    v_and_b32 v6, 31, v1
    v_mul_u32_u24 v6, {PART_PITCH}, v6
    v_lshrrev_b32 v7, 5, v1
    v_lshl_add_u32 v6, v7, 4, v6
    s_mul_i32 s53, s3, {PART_SZ}
    v_add_u32 v6, s53, v6
    s_nop 7
    """)
    for dt in range(2):
        for st in range(2):
            ac = G2ACC + 16*(2*dt+st)
            for qq in range(4):
                a(f"ds_write_b128 v6, v[{ac+4*qq}:{ac+4*qq+3}] offset:{st*32*PART_PITCH + dt*128 + qq*32}")
    a(f"""
    s_waitcnt vmcnt(0)
    ds_write_b128 v5, v[28:31]
    ds_write_b128 v5, v[32:35] offset:{32*Y2PITCH}
    s_waitcnt lgkmcnt(0)
    s_barrier
    v_mul_u32_u24 v6, {PART_PITCH}, v11
    v_lshl_add_u32 v6, v13, 5, v6
    v_bfe_u32 v7, v1, 2, 2               ; r
    v_lshl_add_u32 v7, v13, 3, v7        ; 8gq + r
    v_mul_u32_u24 v7, {Y2PITCH}, v7
    v_and_b32 v8, 3, v1
    v_lshl_add_u32 v7, v8, 3, v7
    s_lshl_b32 s53, s3, 5
    s_add_u32 s53, s53, {Y2L}
    v_add_u32 v7, s53, v7
    """)
    for it in range(2):
        B = 64 + it*40
        for p in range(4):
            for hh in range(2):
                a(f"ds_read_b128 v[{B+8*p+4*hh}:{B+8*p+4*hh+3}], v6 offset:{p*PART_SZ + it*128 + hh*16}")
        for kk in range(2):
            a(f"ds_read_b64_tr_b16 v[{B+32+2*kk}:{B+33+2*kk}], v7 offset:{(it*32+kk*4)*Y2PITCH}")
    a("""v_sub_f32 v25, 1.0, v24
         v_cvt_pk_bf16_f32 v25, v25, v25
         v_lshlrev_b32 v25, 16, v25      ; omg""")
    for it in range(2):
        B = 64 + it*40
        a(f"s_waitcnt lgkmcnt({10 if it == 0 else 0})")
        for j in range(8):
            a(f"v_add_f32 v{B+j}, v{B+j}, v{B+8+j}")
            a(f"v_add_f32 v{B+16+j}, v{B+16+j}, v{B+24+j}")
        for j in range(8):
            a(f"v_add_f32 v{B+j}, v{B+j}, v{B+16+j}")
        qr = 16 + 4*it
        o = 150 + 4*it
        for j in range(4):
            a(f"""v_cvt_pk_bf16_f32 v36, v{B+2*j}, v{B+2*j+1}
                  v_lshlrev_b32 v37, 16, v36
                  v_and_b32 v38, 0xffff0000, v36
                  v_mul_f32 v37, v25, v37
                  v_mul_f32 v38, v25, v38
                  v_cvt_pk_bf16_f32 v36, v37, v38
                  v_lshlrev_b32 v37, 16, v36
                  v_and_b32 v38, 0xffff0000, v36
                  v_lshlrev_b32 v39, 16, v{qr+j}
                  v_and_b32 v40, 0xffff0000, v{qr+j}
                  v_lshlrev_b32 v41, 16, v{B+32+j}
                  v_and_b32 v42, 0xffff0000, v{B+32+j}
                  v_mul_f32 v39, v39, v41
                  v_mul_f32 v40, v40, v42
                  v_cvt_pk_bf16_f32 v39, v39, v40
                  v_lshlrev_b32 v41, 16, v39
                  v_and_b32 v42, 0xffff0000, v39
                  v_mul_f32 v41, v24, v41
                  v_mul_f32 v42, v24, v42
                  v_cvt_pk_bf16_f32 v39, v41, v42
                  v_lshlrev_b32 v41, 16, v39
                  v_and_b32 v42, 0xffff0000, v39
                  v_add_f32 v37, v37, v41
                  v_add_f32 v38, v38, v42
                  v_cvt_pk_bf16_f32 v{o+j}, v37, v38""")
        a(f"buffer_store_dwordx4 v[{o}:{o+3}], v14, s[{S2_OUT}:{S2_OUT+3}], s56 offen offset:{it*64}")

CH_SZ = 21248
P_PITCH = 4160
U_OFF = 16640
XB = 2*CH_SZ
CA = 64
CACC = 192

def conv_loads(a, it, buf):
    L = []
    A = CA + 64*buf; Z = A + 32
    for i in range(8):
        L.append(f"ds_read_b64_tr_b16 v[{A+4*i}:{A+4*i+1}], v10 offset:{512*i + 8 + 64*it}")
        L.append(f"ds_read_b64_tr_b16 v[{A+4*i+2}:{A+4*i+3}], v10 offset:{512*i + 64*it}")
        L.append(f"ds_read_b128 v[{Z+4*i}:{Z+4*i+3}], v11 offset:{512*i + 192 - 64*it}")
    return L

def gen_conv(a, usc=""):
    a(f"""
    v_and_b32 v1, 63, v0
    s_lshr_b32 s51, s3, 1                ; ch
    s_and_b32 s52, s3, 1                 ; half
    s_lshl_b32 s53, s2, 1
    s_add_u32 s53, s53, s51              ; channel d
    s_lshl_b32 s55, s53, 12              ; d*4096
    s_mul_i32 s56, s51, {CH_SZ}          ; CB
    v_lshlrev_b32 v2, 4, v1              ; l*16
    s_lshl_b32 s57, s52, 11
    s_add_u32 s58, s55, s57
    v_add_u32 v3, s58, v2
    v_subrev_u32 v4, 4, v3
    v_subrev_u32 v5, 8, v3
    buffer_load_dwordx4 v[16:19], v3, s[{S2_SK}:{S2_SK+3}], 0 offen
    buffer_load_dwordx4 v[20:23], v4, s[{S2_SK}:{S2_SK+3}], 0 offen
    buffer_load_dwordx4 v[24:27], v5, s[{S2_SK}:{S2_SK+3}], 0 offen
    v_add_u32 v4, 1024, v4
    v_add_u32 v5, 1024, v5
    buffer_load_dwordx4 v[28:31], v3, s[{S2_SK}:{S2_SK+3}], 0 offen offset:1024
    buffer_load_dwordx4 v[32:35], v4, s[{S2_SK}:{S2_SK+3}], 0 offen
    buffer_load_dwordx4 v[36:39], v5, s[{S2_SK}:{S2_SK+3}], 0 offen
    s_lshl_b32 s59, s53, 1
    v_mov_b32 v6, s59
    buffer_load_ushort v40, v6, s[{S2_SD}:{S2_SD+3}], 0 offen
    ; u DMA
    s_add_u32 s59, s56, s57
    s_add_u32 m0, s59, {U_OFF+512}
    s_add_u32 s60, s58, {UT_OFF}
    buffer_load_dwordx4 v2, s[{S2_WS}:{S2_WS+3}], s60 offen lds {usc}
    s_add_u32 m0, s59, {U_OFF+512+1024}
    s_add_u32 s60, s60, 1024
    buffer_load_dwordx4 v2, s[{S2_WS}:{S2_WS+3}], s60 offen lds {usc}
    v_mov_b32 v44, 0
    v_mov_b32 v45, 0
    v_mov_b32 v46, 0
    v_mov_b32 v47, 0
    v_add_u32 v7, {U_OFF}, v2
    v_subrev_u32 v8, 32, v1              ; l-32
    v_lshrrev_b32 v9, 2, v8              ; copy r
    v_mul_u32_u24 v9, {P_PITCH}, v9
    v_and_b32 v8, 3, v8
    v_lshl_add_u32 v9, v8, 4, v9
    v_cmp_gt_u32 vcc, 32, v1
    s_nop 1
    v_cndmask_b32 v7, v9, v7, vcc
    v_add_u32 v7, s56, v7
    v_cmp_gt_u32 vcc, 48, v1
    s_and_saveexec_b64 s[62:63], vcc
    ds_write_b128 v7, v[44:47]
    s_mov_b64 exec, s[62:63]
    v_lshrrev_b32 v12, 4, v1             ; g
    v_bfe_u32 v13, v1, 2, 2              ; r
    v_and_b32 v14, 3, v1                 ; cc
    v_lshrrev_b32 v15, 1, v12            ; g>>1
    v_and_b32 v41, 1, v12                ; g&1
    v_lshlrev_b32 v42, 5, v15            ; 32(g>>1)
    v_lshlrev_b32 v43, 4, v41            ; 16(g&1)
    v_mul_u32_u24 v10, {P_PITCH}, v13
    v_add_u32 v10, v10, v42
    v_sub_u32 v10, v10, v43
    v_lshl_add_u32 v10, v14, 3, v10
    s_lshl_b32 s59, s52, 8               ; 64*4*half
    s_add_u32 s60, s56, s59
    s_add_u32 s60, s60, {64-8}
    v_add_u32 v10, s60, v10              ; A addr
    v_and_b32 v11, 15, v1
    v_lshlrev_b32 v11, 5, v11            ; 32n
    v_sub_u32 v11, v11, v42
    v_add_u32 v11, v11, v43
    s_sub_u32 s60, s56, s59
    s_add_u32 s60, s60, {U_OFF+512-192}
    v_add_u32 v11, s60, v11              ; Z addr
    s_add_u32 s60, s56, s57
    s_add_u32 s60, s60, 64
    v_add_u32 v9, s60, v2
    v_or_b32 v8, s52, v1
    v_cmp_eq_u32 vcc, 0, v8
    s_waitcnt vmcnt(3)
    v_cndmask_b32 v20, v20, 0, vcc
    v_cndmask_b32 v24, v24, 0, vcc
    v_cndmask_b32 v25, v25, 0, vcc
    """)
    a.lines = [ln.replace("v_cndmask_b32 v20, v20, 0, vcc", "v_cndmask_b32 v20, v20, v44, vcc")
                 .replace("v_cndmask_b32 v24, v24, 0, vcc", "v_cndmask_b32 v24, v24, v44, vcc")
                 .replace("v_cndmask_b32 v25, v25, 0, vcc", "v_cndmask_b32 v25, v25, v44, vcc") for ln in a.lines]
    for it in range(2):
        W, X, Zr = 16+12*it, 20+12*it, 24+12*it
        if it == 1: a("s_waitcnt vmcnt(3)")
        for j in range(4):
            a(f"v_alignbit_b32 v{48+j}, v{W+j}, v{X+j}, 16")
            a(f"v_alignbit_b32 v{52+j}, v{X+j}, v{Zr+j}, 16")
        a(f"ds_write_b128 v9, v[{W}:{W+3}] offset:{it*1024}")
        a(f"ds_write_b128 v9, v[48:51] offset:{P_PITCH + it*1024}")
        a(f"ds_write_b128 v9, v[{X}:{X+3}] offset:{2*P_PITCH + it*1024}")
        a(f"ds_write_b128 v9, v[52:55] offset:{3*P_PITCH + it*1024}")
        if it == 0: a("s_nop 2")
    a("s_waitcnt vmcnt(0) lgkmcnt(0)")
    a("s_barrier")
    for ln in conv_loads(a, 0, 0): a(ln)
    pairs = [(i, c-i) for c in range(8) for i in range(c+1)]
    for it in range(4):
        a("s_waitcnt lgkmcnt(0)")
        nxt = conv_loads(a, it+1, (it+1) & 1) if it < 3 else []
        A = CA + 64*(it & 1); Z = A + 32
        seen = set()
        for n, (i, cp) in enumerate(pairs):
            c = i + cp
            ac = CACC + 4*c
            cc = "0" if (it == 0 and c not in seen) else f"v[{ac}:{ac+3}]"
            seen.add(c)
            a(f"v_mfma_f32_16x16x32_bf16 v[{ac}:{ac+3}], v[{A+4*i}:{A+4*i+3}], v[{Z+4*cp}:{Z+4*cp+3}], {cc}")
            if n % 3 == 2 and nxt:
                a(nxt.pop(0)); a(nxt.pop(0))
    a(f"""
    s_nop 15
    s_lshl_b32 s59, s3, 12
    s_add_u32 s59, s59, {XB}
    v_add_u32 v12, s59, v2
    s_xor_b32 s60, s3, 1
    s_lshl_b32 s60, s60, 12
    s_add_u32 s60, s60, {XB}
    v_add_u32 v13, s60, v2
    s_cmp_eq_u32 s52, 0
    """)
    l1 = a.newlabel("CVH1"); l2 = a.newlabel("CVJ")
    a(f"s_cbranch_scc0 {l1}")
    for t in range(4): a(f"ds_write_b128 v12, v[{CACC+16+4*t}:{CACC+16+4*t+3}] offset:{t*1024}")
    for t in range(16): a(f"v_mov_b32 v{64+t}, v{CACC+t}")
    a(f"s_branch {l2}")
    a.label(l1)
    for t in range(4): a(f"ds_write_b128 v12, v[{CACC+4*t}:{CACC+4*t+3}] offset:{t*1024}")
    for t in range(16): a(f"v_mov_b32 v{64+t}, v{CACC+16+t}")
    a.label(l2)
    a(f"""
    v_and_b32 v14, 15, v1
    v_lshlrev_b32 v14, 5, v14            ; 32n
    v_lshrrev_b32 v15, 4, v1
    v_lshl_add_u32 v14, v15, 3, v14
    s_lshl_b32 s59, s52, 11              ; half*4*512
    s_add_u32 s60, s56, s59
    s_add_u32 s60, s60, {U_OFF+512}
    v_add_u32 v15, s60, v14
    s_add_u32 s60, s55, s59
    s_add_u32 s60, s60, {Y2_OFF}
    s_waitcnt lgkmcnt(0)
    s_barrier
    """)
    for t in range(4):
        a(f"ds_read_b128 v[{80+4*t}:{83+4*t}], v13 offset:{t*1024}")
        a(f"ds_read_b64 v[{96+2*t}:{97+2*t}], v15 offset:{t*512}")
    a("v_lshlrev_b32 v40, 16, v40")
    a("s_waitcnt lgkmcnt(0)")
    for t in range(4):
        for j in range(4): a(f"v_add_f32 v{64+4*t+j}, v{64+4*t+j}, v{80+4*t+j}")
        for j in range(2):
            y0, y1 = 64+4*t+2*j, 64+4*t+2*j+1
            u = 96+2*t+j
            a(f"""v_cvt_pk_bf16_f32 v104, v{y0}, v{y1}
                  v_lshlrev_b32 v105, 16, v104
                  v_and_b32 v106, 0xffff0000, v104
                  v_lshlrev_b32 v107, 16, v{u}
                  v_and_b32 v108, 0xffff0000, v{u}
                  v_mul_f32 v107, v40, v107
                  v_mul_f32 v108, v40, v108
                  v_cvt_pk_bf16_f32 v104, v107, v108
                  v_lshlrev_b32 v107, 16, v104
                  v_and_b32 v108, 0xffff0000, v104
                  v_add_f32 v105, v105, v107
                  v_add_f32 v106, v106, v108
                  v_cvt_pk_bf16_f32 v{110+2*t+j}, v105, v106""")
        a(f"buffer_store_dwordx2 v[{110+2*t}:{111+2*t}], v14, s[{S2_WS}:{S2_WS+3}], s60 offen offset:{t*512} sc1")
    a(f"""
    s_waitcnt vmcnt(0)
    s_barrier
    s_lshr_b32 s59, s2, 5                ; cb = j>>5
    s_lshl_b32 s59, s59, 2
    v_mov_b32 v2, s59
    v_mov_b32 v3, 1
    v_cmp_eq_u32 vcc, 0, v0
    s_and_saveexec_b64 s[62:63], vcc
    s_cbranch_execz CV_END
    buffer_atomic_add v3, v2, s[{S2_DBG}:{S2_DBG+3}], 0 offen sc1
    """)
    a.label("CV_END")

def gen_k2(a):
    a.label("k2_kernel")
    a("s_cmp_ge_u32 s2, 512")
    a("s_cbranch_scc1 K2_END")
    prologue_ptrs(a)
    a("""v_lshrrev_b32 v1, 6, v0
         s_nop 0
         v_readfirstlane_b32 s3, v1
         s_waitcnt lgkmcnt(0)""")
    srd(a, S2_H, 'ws', 2048*3584); srd(a, S2_W2, 'w2', 1792*1024); srd(a, S2_Q, 'q', MB2)
    srd(a, S2_OUT, 'out', MB2); srd(a, S2_WS, 'ws', WS_SZ); srd(a, S2_DBG, 'dbg', 256)
    srd(a, S2_SK, 'ssmk', MB2); srd(a, S2_SD, 'ssmD', 1024)
    a("s_cmp_ge_u32 s2, 256")
    a("s_cbranch_scc1 K2_CONV")
    gen_g2(a)
    a("s_endpgm")
    a.label("K2_CONV")
    a("s_sub_u32 s2, s2, 256")
    gen_conv(a)
    a.label("K2_END")
    a("s_endpgm")

KD = """.p2align 6
.amdhsa_kernel {name}
  .amdhsa_next_free_vgpr {vgpr}
  .amdhsa_next_free_sgpr 102
  .amdhsa_accum_offset {acc}
  .amdhsa_group_segment_fixed_size 0
  .amdhsa_kernarg_size 104
  .amdhsa_user_sgpr_count 2
  .amdhsa_user_sgpr_kernarg_segment_ptr 1
  .amdhsa_system_sgpr_workgroup_id_x 1
.end_amdhsa_kernel
"""

def main(out):
    hdr = """; gated_mix: conv + FFN  (generated by dev/gen_k2.py)
; @launch kernel=k1_kernel grid=(256,1,1) block=(256,1,1) lds=131072
; @launch kernel=k2_kernel grid=(512,1,1) block=(256,1,1) lds=81920
.amdgcn_target "amdgcn-amd-amdhsa--gfx950"
.text
"""
    a = Asm()
    a.lines.append(".globl k1_kernel\n.p2align 8\n.type k1_kernel,@function")
    gen_k1(a)
    a.lines.append(".globl k2_kernel\n.p2align 8\n.type k2_kernel,@function")
    gen_k2(a)
    t = hdr + a.text() + '.section .rodata,"a"\n' + KD.format(name="k1_kernel", vgpr=240, acc=240) + KD.format(name="k2_kernel", vgpr=224, acc=224)
    open(out, "w").write(t)

if __name__ == "__main__":
    import sys
    main(sys.argv[1] if len(sys.argv) > 1 else "v1.s")
```

```python
from asmlib import *

H_OFF  = 0
UT_OFF = 8 << 20
Y2_OFF = 10 << 20
G_OFF  = 12 << 20
F_OFF  = 13 << 20
WS_SZ  = 16 << 20
MB2 = 2048*512*2

P = dict(q=64, k=66, v=68, shk=70, ssmk=72, ssmD=74, x=76, w1=78, w2=80, gw=82, out=84, dbg=86, ws=88)

def prologue_ptrs(a):
    a("""s_load_dwordx16 s[64:79], s[0:1], 0
         s_load_dwordx8 s[80:87], s[0:1], 64
         s_load_dwordx2 s[88:89], s[0:1], 96""")

def srd(a, d, name, size):
    a(f"""s_mov_b32 s{d}, s{P[name]}
          s_and_b32 s{d+1}, s{P[name]+1}, 0xffff
          s_mov_b32 s{d+2}, {size}
          s_mov_b32 s{d+3}, 0x00020000""")

TS_OFF = 14 << 20
STAMP = [False]
def stamp(a, i):
    if not STAMP[0]: return
    a(f"""s_memrealtime s[90:91]
          s_waitcnt lgkmcnt(0)
          s_mov_b32 s{92+i}, s90""")
def stamp_flush(a, srdws, base, n):
    if not STAMP[0]: return
    l = a.newlabel("TSF")
    a(f"""s_cmp_lg_u32 s3, 0
          s_cbranch_scc1 {l}
          s_lshl_b32 s90, s2, 5
          s_add_u32 s90, s90, {base}
          v_mov_b32 v2, 0""")
    for i in range(n):
        a(f"v_mov_b32 v3, s{92+i}")
        a(f"buffer_store_dword v3, v2, s[{srdws}:{srdws+3}], s90 offen offset:{4*i}")
    a.label(l)

SRD_Q, SRD_K, SRD_V, SRD_SHK, SRD_X, SRD_W1, SRD_GW, SRD_WS = 4, 8, 12, 16, 20, 24, 28, 32

def emit_u_gate_loads(a, sW, sID):
    a(f"""
    v_and_b32 v1, 63, v0                 ; lane
    v_lshrrev_b32 v2, 5, v1              ; sg
    v_and_b32 v6, 31, v1                 ; cp
    s_lshr_b32 s36, s{sID}, 3            ; sb
    s_and_b32 s37, s{sID}, 7             ; db
    s_lshl_b32 s36, s36, 6               ; 64*sb
    s_lshl_b32 s38, s{sW}, 4             ; 16*w
    s_add_u32 s36, s36, s38              ; 64sb+16w
    v_lshlrev_b32 v2, 3, v2              ; 8*sg
    v_add_u32 v3, s36, v2                ; srow
    s_lshl_b32 s37, s37, 6               ; 64 db
    v_lshlrev_b32 v6, 1, v6              ; 2cp
    v_add_u32 v6, s37, v6                ; d
    v_lshlrev_b32 v4, 10, v3             ; srow*1024
    v_lshl_add_u32 v4, v6, 1, v4         ; + d*2
    v_subrev_u32 v5, 3072, v4
    v_cmp_eq_u32 vcc, 0, v3
    v_mov_b32 v7, 0x80000000
    s_nop 1
    v_cndmask_b32 v5, v5, v7, vcc
    s_movk_i32 s39, 0x1000
    s_movk_i32 s40, 0x2000
    buffer_load_dword v16, v5, s[{SRD_K}:{SRD_K+3}], 0 offen
    buffer_load_dword v17, v5, s[{SRD_K}:{SRD_K+3}], 0 offen offset:1024
    buffer_load_dword v18, v5, s[{SRD_K}:{SRD_K+3}], 0 offen offset:2048
    """)
    for r in range(8):
        so = "0" if r < 4 else "s39"
        a(f"buffer_load_dword v{19+r}, v4, s[{SRD_K}:{SRD_K+3}], {so} offen offset:{(r&3)*1024}")
    for r in range(8):
        so = "0" if r < 4 else "s39"
        a(f"buffer_load_dword v{27+r}, v4, s[{SRD_V}:{SRD_V+3}], {so} offen offset:{(r&3)*1024}")
    a(f"""
    v_lshlrev_b32 v8, 3, v6              ; d*8
    buffer_load_dwordx4 v[36:39], v8, s[{SRD_SHK}:{SRD_SHK+3}], 0 offen
    s_lshl_b32 s41, s{sID}, 3            ; 8*id
    s_lshl_b32 s42, s{sW}, 1
    s_add_u32 s41, s41, s42
    s_lshl_b32 s42, s41, 10              ; row*1024
    v_lshlrev_b32 v9, 4, v1              ; lane*16
    buffer_load_dwordx4 v[40:43], v9, s[{SRD_Q}:{SRD_Q+3}], s42 offen
    buffer_load_dwordx4 v[44:47], v9, s[{SRD_Q}:{SRD_Q+3}], s42 offen offset:1024
    buffer_load_dwordx4 v[48:51], v9, s[{SRD_GW}:{SRD_GW+3}], 0 offen
    """)
    return 11 + 8 + 1 + 3

def emit_u_gate_compute(a, sc=""):
    for r in range(11):
        a(f"v_lshlrev_b32 v{52+2*r}, 16, v{16+r}")
        a(f"v_and_b32 v{53+2*r}, 0xffff0000, v{16+r}")
    for r in range(8):
        a(f"v_lshlrev_b32 v{74+2*r}, 16, v{27+r}")
        a(f"v_and_b32 v{75+2*r}, 0xffff0000, v{27+r}")
    a("""v_lshlrev_b32 v90, 16, v36
         v_lshlrev_b32 v91, 16, v38
         v_and_b32 v92, 0xffff0000, v36
         v_and_b32 v93, 0xffff0000, v38
         v_lshlrev_b32 v94, 16, v37
         v_lshlrev_b32 v95, 16, v39
         v_and_b32 v96, 0xffff0000, v37
         v_and_b32 v97, 0xffff0000, v39""")
    for r in range(8):
        d = 98 + 2*r
        K = lambda i: f"v[{52+2*i}:{53+2*i}]"
        a(f"v_pk_mul_f32 v[{d}:{d+1}], {K(r)}, v[96:97]")
        a(f"v_pk_fma_f32 v[{d}:{d+1}], {K(r+1)}, v[94:95], v[{d}:{d+1}]")
        a(f"v_pk_fma_f32 v[{d}:{d+1}], {K(r+2)}, v[92:93], v[{d}:{d+1}]")
        a(f"v_pk_fma_f32 v[{d}:{d+1}], {K(r+3)}, v[90:91], v[{d}:{d+1}]")
    for r in range(8):
        d = 98 + 2*r
        a(f"v_cvt_pk_bf16_f32 v2, v{d}, v{d+1}")
        a(f"v_lshlrev_b32 v{d}, 16, v2")
        a(f"v_and_b32 v{d+1}, 0xffff0000, v2")
        a(f"v_pk_mul_f32 v[{d}:{d+1}], v[{d}:{d+1}], v[{74+2*r}:{75+2*r}]")
    for j in range(4):
        a(f"v_cvt_pk_bf16_f32 v{116+j}, v{98+4*j}, v{100+4*j}")
        a(f"v_cvt_pk_bf16_f32 v{120+j}, v{99+4*j}, v{101+4*j}")
    a(f"""
    v_lshlrev_b32 v2, 12, v6             ; d*4096
    v_lshl_add_u32 v2, v3, 1, v2         ; + srow*2
    s_mov_b32 s43, {UT_OFF}
    s_mov_b32 s44, {UT_OFF+4096}
    buffer_store_dwordx4 v[116:119], v2, s[{SRD_WS}:{SRD_WS+3}], s43 offen {sc}
    buffer_store_dwordx4 v[120:123], v2, s[{SRD_WS}:{SRD_WS+3}], s44 offen {sc}
    """)
    a("""
    v_mov_b32 v10, 0
    v_mov_b32 v11, 0
    v_dot2_f32_bf16 v10, v40, v48, v10
    v_dot2_f32_bf16 v11, v44, v48, v11
    v_dot2_f32_bf16 v10, v41, v49, v10
    v_dot2_f32_bf16 v11, v45, v49, v11
    v_dot2_f32_bf16 v10, v42, v50, v10
    v_dot2_f32_bf16 v11, v46, v50, v11
    v_dot2_f32_bf16 v10, v43, v51, v10
    v_dot2_f32_bf16 v11, v47, v51, v11
    s_nop 4
    """)
    for dpp in ["row_shr:1 row_mask:0xf bank_mask:0xf bound_ctrl:0",
                "row_shr:2 row_mask:0xf bank_mask:0xf bound_ctrl:0",
                "row_shr:4 row_mask:0xf bank_mask:0xf bound_ctrl:0",
                "row_shr:8 row_mask:0xf bank_mask:0xf bound_ctrl:0",
                "row_bcast:15 row_mask:0xa bank_mask:0xf",
                "row_bcast:31 row_mask:0xc bank_mask:0xf"]:
        a(f"v_add_f32_dpp v10, v10, v10 {dpp}")
        a(f"v_add_f32_dpp v11, v11, v11 {dpp}")
        a("s_nop 1")
    a(f"""
    v_readlane_b32 s45, v10, 63
    v_readlane_b32 s46, v11, 63
    s_nop 3
    v_mov_b32 v10, s45
    v_mov_b32 v11, s46
    v_cvt_pk_bf16_f32 v10, v10, v11
    v_lshlrev_b32 v12, 16, v10
    v_and_b32 v13, 0xffff0000, v10
    v_mul_f32 v12, 0xbfb8aa3b, v12       ; -x*log2e
    v_mul_f32 v13, 0xbfb8aa3b, v13
    v_exp_f32 v12, v12
    v_exp_f32 v13, v13
    s_nop 0
    v_add_f32 v12, 1.0, v12
    v_add_f32 v13, 1.0, v13
    v_rcp_f32 v12, v12
    v_rcp_f32 v13, v13
    s_nop 0
    v_cvt_pk_bf16_f32 v10, v12, v13
    v_lshlrev_b32 v12, 16, v10
    v_and_b32 v13, 0xffff0000, v10
    s_lshl_b32 s42, s41, 2               ; row*4
    s_add_u32 s42, s42, {G_OFF}
    v_mov_b32 v14, 0
    v_cmp_eq_u32 vcc, 0, v1
    s_and_saveexec_b64 s[46:47], vcc
    buffer_store_dwordx2 v[12:13], v14, s[{SRD_WS}:{SRD_WS+3}], s42 offen {sc}
    s_mov_b64 exec, s[46:47]
    """)
    return 3

ACC = 128
FR  = 192
XA  = 224
WA  = 232
VX, VW = 236, 237

def g1_setup(a, sW, nslots, slot_bytes=32768):
    a(f"""
    v_lshrrev_b32 v2, 3, v1              ; i>>3
    s_lshl_b32 s53, s{sW}, 3
    v_add_u32 v2, s53, v2                ; 8w + (i>>3)
    v_lshlrev_b32 v2, 10, v2
    v_lshrrev_b32 v3, 4, v1              ; i>>4
    s_and_b32 s53, s{sW}, 1
    s_lshl_b32 s53, s53, 2
    v_add_u32 v4, s53, v3                ; 4(w&1) + (i>>4)
    v_and_b32 v5, 7, v1
    v_xor_b32 v5, v5, v4
    v_lshl_add_u32 v{VX}, v5, 4, v2
    v_mul_u32_u24 v2, 3584, v3
    v_and_b32 v5, 15, v1
    v_lshlrev_b32 v4, 2, v3
    v_xor_b32 v5, v5, v4
    v_lshl_add_u32 v{VW}, v5, 4, v2
    v_and_b32 v2, 31, v1
    v_lshlrev_b32 v2, 7, v2              ; (l&31)*128
    s_lshl_b32 s53, s51, 13              ; wr*64*128
    v_add_u32 v2, s53, v2
    v_lshrrev_b32 v3, 5, v1              ; hi
    v_bfe_u32 v4, v1, 1, 3               ; (l>>1)&7
    v_xor_b32 v4, v3, v4
    v_lshl_add_u32 v2, v4, 4, v2
    """)
    for ks in range(4):
        a(f"v_xor_b32 v{XA+2*ks}, {ks*32}, v2")
        a(f"v_add_u32 v{XA+2*ks+1}, 0x10000, v{XA+2*ks}")
    a(f"""
    v_bfe_u32 v4, v1, 2, 2               ; r
    v_and_b32 v5, 3, v1                  ; c
    v_bfe_u32 v6, v1, 4, 1               ; fhalf
    v_lshl_add_u32 v7, v3, 3, v4         ; 8hi + r
    v_lshlrev_b32 v7, 8, v7              ; *256
    v_add_u32 v7, 16384, v7
    v_and_b32 v8, 1, v5
    v_lshl_add_u32 v7, v8, 3, v7         ; + (c&1)*8
    v_lshrrev_b32 v8, 1, v5              ; c>>1
    v_lshl_add_u32 v8, v6, 1, v8         ; 2fhalf + (c>>1)
    s_lshl_b32 s53, s52, 3               ; 8wc
    v_add_u32 v8, s53, v8                ; p0 (ft=0)
    v_lshlrev_b32 v9, 2, v4              ; r<<2
    v_xor_b32 v10, v8, v9
    v_lshl_add_u32 v{WA}, v10, 4, v7
    v_add_u32 v8, 4, v8
    v_xor_b32 v10, v8, v9
    v_lshl_add_u32 v{WA+2}, v10, 4, v7
    v_add_u32 v{WA+1}, 0x10000, v{WA}
    v_add_u32 v{WA+3}, 0x10000, v{WA+2}
    """)

def g1_issue(a, c, slot):
    for t in range(4):
        a(f"s_add_u32 m0, s50, {slot*32768 + t*4096}")
        a(f"s_add_u32 s54, s48, {t*32768 + c*128}")
        a(f"buffer_load_dwordx4 v{VX}, s[{SRD_X}:{SRD_X+3}], s54 offen lds")
    for t in range(4):
        a(f"s_add_u32 m0, s50, {slot*32768 + 16384 + t*4096}")
        a(f"s_add_u32 s54, s49, {c*229376 + t*57344}")
        a(f"buffer_load_dwordx4 v{VW}, s[{SRD_W1}:{SRD_W1+3}], s54 offen lds")

def g1_reads(a, slot, ks, buf):
    base = slot*32768
    h = 1 if base >= 65536 else 0
    base -= h*65536
    f = FR + 16*buf
    for st in range(2):
        a(f"ds_read_b128 v[{f+4*st}:{f+4*st+3}], v{XA+2*ks+h} offset:{base+st*4096}")
    for ft in range(2):
        for kk in range(2):
            r = f + 8 + 4*ft + 2*kk
            a(f"ds_read_b64_tr_b16 v[{r}:{r+1}], v{WA+2*ft+h} offset:{base+ks*4096+kk*1024}")

def g1_mfma(a, buf, first):
    f = FR + 16*buf
    for ft in range(2):
        for st in range(2):
            ac = ACC + 16*(2*ft+st)
            c = "0" if first else f"v[{ac}:{ac+15}]"
            a(f"v_mfma_f32_32x32x16_bf16 v[{ac}:{ac+15}], v[{f+8+4*ft}:{f+8+4*ft+3}], v[{f+4*st}:{f+4*st+3}], {c}")

def g1_main(a, extra_after_dma, sc=""):
    NS = 4
    q = []
    for c in range(4): q += [c]*8
    q += ['x']*extra_after_dma
    def wait_for(c):
        last = max(i for i, t in enumerate(q) if t == c)
        return len(q) - 1 - last
    a(f"s_waitcnt vmcnt({wait_for(0)})")
    a("s_barrier")
    g1_reads(a, 0, 0, 0)
    buf = 0
    for c in range(8):
        for ks in range(4):
            if ks < 3:
                g1_reads(a, c % NS, ks+1, buf ^ 1)
                a("s_waitcnt lgkmcnt(6)")
            else:
                if c < 7:
                    a(f"s_waitcnt vmcnt({wait_for(c+1)}) lgkmcnt(0)")
                    a("s_barrier")
                    if c + 4 < 8:
                        g1_issue(a, c+4, c % NS); q += [c+4]*8
                    g1_reads(a, (c+1) % NS, 0, buf ^ 1)
                else:
                    a("s_waitcnt lgkmcnt(0)")
            g1_mfma(a, buf, c == 0 and ks == 0)
            buf ^= 1
    stamp(a, 3)
    a("s_nop 15")
    a(f"""
    v_and_b32 v2, 31, v1
    s_lshl_b32 s53, s51, 6               ; 64 wr
    s_add_u32 s53, s53, s55              ; + s0
    v_add_u32 v2, s53, v2                ; row
    v_mul_u32_u24 v2, 3584, v2
    v_lshrrev_b32 v3, 5, v1
    v_lshl_add_u32 v2, v3, 4, v2         ; + hi*16
    s_lshl_b32 s53, s52, 7
    s_add_u32 s53, s53, s56              ; + f0*2
    s_add_u32 s53, s53, {H_OFF}
    s_add_u32 s57, s53, {32*3584}
    """)
    for ft in range(2):
        for st in range(2):
            ac = ACC + 16*(2*ft+st)
            for qp in range(2):
                t = FR + 4*((2*(2*ft+st)+qp) % 8)
                b = ac + 8*qp
                for j in range(8):
                    a(f"v_max_f32 v{b+j}, 0, v{b+j}")
                for j in range(4):
                    a(f"v_cvt_pk_bf16_f32 v{t+j}, v{b+2*j}, v{b+2*j+1}")
                a("s_nop 1")
                a(f"v_permlane32_swap_b32 v{t}, v{t+2}")
                a(f"v_permlane32_swap_b32 v{t+1}, v{t+3}")
                so = "s53" if st == 0 else "s57"
                a(f"buffer_store_dwordx4 v[{t}:{t+3}], v2, s[{SRD_WS}:{SRD_WS+3}], {so} offen offset:{ft*64+qp*32} {sc}")

def gen_k1(a):
    a.label("k1_kernel")
    a("s_cmp_ge_u32 s2, 256")
    a("s_cbranch_scc1 K1_END")
    prologue_ptrs(a)
    a("""v_lshrrev_b32 v1, 6, v0
         s_nop 0
         v_readfirstlane_b32 s3, v1
         s_waitcnt lgkmcnt(0)""")
    srd(a, SRD_Q, 'q', MB2); srd(a, SRD_K, 'k', MB2); srd(a, SRD_V, 'v', MB2)
    srd(a, SRD_SHK, 'shk', 4096); srd(a, SRD_X, 'q', MB2); srd(a, SRD_W1, 'w1', 512*1792*2)
    srd(a, SRD_GW, 'gw', 1024); srd(a, SRD_WS, 'ws', WS_SZ)
    stamp(a, 0)
    n = emit_u_gate_loads(a, 3, 2)
    a("""
    s_and_b32 s58, s2, 7                 ; xcd
    s_lshr_b32 s59, s2, 3                ; idx
    s_cmp_ge_u32 s59, 28
    s_cbranch_scc1 K1_NOG1
    s_mul_i32 s60, s59, 37
    s_lshr_b32 s60, s60, 8
    s_mul_i32 s61, s60, 7
    s_sub_u32 s61, s59, s61              ; idx%7
    s_lshr_b32 s62, s58, 1
    s_lshl_b32 s62, s62, 2
    s_add_u32 s60, s60, s62              ; rb
    s_and_b32 s62, s58, 1
    s_mul_i32 s62, s62, 7
    s_add_u32 s61, s61, s62              ; cb
    s_lshl_b32 s55, s60, 7               ; s0
    s_lshl_b32 s56, s61, 8               ; f0*2
    s_lshl_b32 s48, s55, 10              ; s0*1024
    s_mul_i32 s49, s3, 14336
    s_add_u32 s49, s49, s56
    s_lshl_b32 s50, s3, 10
    s_lshr_b32 s51, s3, 1                ; wr
    s_and_b32 s52, s3, 1                 ; wc
    """)
    a("v_mov_b32 v15, v3")
    a("v_mov_b32 v124, v3\n v_mov_b32 v125, v6")
    g1_setup(a, 3, 4)
    a("v_mov_b32 v3, v124\n v_mov_b32 v6, v125")
    for c in range(4): g1_issue(a, c, c)
    a("s_waitcnt vmcnt(32)")
    stamp(a, 1)
    ns = emit_u_gate_compute(a)
    stamp(a, 2)
    g1_main(a, ns)
    stamp(a, 4)
    a("s_waitcnt vmcnt(0)")
    stamp(a, 5)
    stamp_flush(a, SRD_WS, TS_OFF, 6)
    a("s_endpgm")
    a.label("K1_NOG1")
    a(f"""
    s_sub_u32 s53, s2, 224
    s_lshl_b32 s53, s53, 8
    s_add_u32 s53, s53, {F_OFF}
    v_lshlrev_b32 v126, 2, v1
    v_mov_b32 v127, 0
    buffer_store_dword v127, v126, s[{SRD_WS}:{SRD_WS+3}], s53 offen
    """)
    a("s_waitcnt vmcnt(0)")
    emit_u_gate_compute(a)
    a.label("K1_END")
    a("s_endpgm")
```

```python
from asmlib import *
from gen_k1 import *

PF = [False, '']
EXP = set()
SLEEP = [8]
PRIO = [0]
S2_H, S2_W2, S2_Q, S2_OUT, S2_WS, S2_DBG, S2_SK, S2_SD = 4, 8, 12, 16, 20, 24, 28, 32

G2ACC = 64
G2FR  = 128
G2HA  = 160
G2WA  = 162
G2VH, G2VW = 166, 167
NSL = 5

def g2_issue(a, c, slot, ldflag=""):
    for t in range(2):
        a(f"s_add_u32 m0, s50, {slot*16384 + t*4096}")
        a(f"s_add_u32 s54, s48, {t*32*3584 + c*128}")
        a(f"buffer_load_dwordx4 v{G2VH}, s[{S2_H}:{S2_H+3}], s54 offen lds {ldflag}")
    for t in range(2):
        a(f"s_add_u32 m0, s50, {slot*16384 + 8192 + t*4096}")
        a(f"s_add_u32 s54, s49, {(c*64 + 32*t)*1024}")
        a(f"buffer_load_dwordx4 v{G2VW}, s[{S2_W2}:{S2_W2+3}], s54 offen lds")

def g2_reads(a, slot, buf):
    base = slot*16384
    h = 1 if base >= 65536 else 0
    base -= h*65536
    f = G2FR + 16*buf
    for st in range(2):
        a(f"ds_read_b128 v[{f+4*st}:{f+4*st+3}], v{G2HA+h} offset:{base+st*4096}")
    for dt in range(2):
        for kk in range(2):
            r = f + 8 + 4*dt + 2*kk
            a(f"ds_read_b64_tr_b16 v[{r}:{r+1}], v{G2WA+2*dt+h} offset:{base+kk*512}")

def g2_mfma(a, buf, first):
    f = G2FR + 16*buf
    for dt in range(2):
        for st in range(2):
            ac = G2ACC + 16*(2*dt+st)
            c = "0" if first else f"v[{ac}:{ac+15}]"
            a(f"v_mfma_f32_32x32x16_bf16 v[{ac}:{ac+15}], v[{f+8+4*dt}:{f+8+4*dt+3}], v[{f+4*st}:{f+4*st+3}], {c}")

PART_PITCH = 272
PART_SZ = 64*PART_PITCH
Y2L = 4*PART_SZ
Y2PITCH = 144

def gen_g2(a, hsc=""):
    a(f"""
    s_and_b32 s58, s2, 7
    s_lshr_b32 s59, s2, 3
    s_lshr_b32 s60, s59, 3
    s_lshl_b32 s61, s58, 2
    s_add_u32 s60, s60, s61              ; rb
    s_and_b32 s61, s59, 7                ; cb
    s_lshl_b32 s55, s60, 6               ; s0
    s_lshl_b32 s56, s61, 7               ; d0*2
    s_mul_i32 s48, s55, 3584
    s_mov_b32 s49, s56
    s_lshl_b32 s50, s3, 10
    v_and_b32 v1, 63, v0
    v_lshrrev_b32 v2, 3, v1
    s_lshl_b32 s53, s3, 3
    v_add_u32 v2, s53, v2                ; 8w + (i>>3)
    v_lshrrev_b32 v3, 4, v1              ; i>>4
    s_and_b32 s53, s3, 1
    s_lshl_b32 s53, s53, 2
    v_add_u32 v4, s53, v3
    v_and_b32 v5, 7, v1
    v_xor_b32 v6, v5, v4
    v_mul_u32_u24 v7, 3584, v2
    v_lshl_add_u32 v{G2VH}, v6, 4, v7
    v_and_b32 v4, 1, v3
    v_lshlrev_b32 v4, 2, v4
    v_xor_b32 v6, v5, v4
    v_lshlrev_b32 v7, 10, v2
    v_lshl_add_u32 v{G2VW}, v6, 4, v7
    """)
    stamp(a, 0)
    for c in range(4): g2_issue(a, c, c, hsc)
    npf = 0
    if PF[0]:
        a(f"""
        v_lshrrev_b32 v30, 3, v1
        s_lshl_b32 s53, s59, 3
        v_add_u32 v30, s53, v30              ; idx*8 + (l>>3)
        s_lshl_b32 s53, s3, 8
        v_add_u32 v30, s53, v30              ; + w*256
        v_lshlrev_b32 v30, 10, v30
        v_and_b32 v31, 7, v1
        v_lshl_add_u32 v30, v31, 7, v30
        buffer_load_dword v32, v30, s[{S2_W2}:{S2_W2+3}], 0 offen {PF[1]}
        s_mov_b32 s53, {1024*1024}
        buffer_load_dword v33, v30, s[{S2_W2}:{S2_W2+3}], s53 offen {PF[1]}
        v_lshrrev_b32 v30, 3, v1
        s_lshl_b32 s53, s59, 3
        s_lshl_b32 s62, s58, 8
        s_add_u32 s53, s53, s62
        v_add_u32 v30, s53, v30
        v_mul_u32_u24 v30, 3584, v30
        s_lshl_b32 s53, s3, 3
        v_add_u32 v31, s53, v31
        v_min_u32 v31, 27, v31
        v_lshl_add_u32 v30, v31, 7, v30
        buffer_load_dword v34, v30, s[{S2_H}:{S2_H+3}], 0 offen {PF[1]}
        """)
        npf = 3
    a(f"""
    v_and_b32 v2, 31, v1
    v_lshlrev_b32 v2, 7, v2
    v_lshrrev_b32 v3, 5, v1              ; hi
    s_lshl_b32 s53, s3, 1
    v_add_u32 v4, s53, v3                ; p = 2w+hi
    v_bfe_u32 v5, v1, 1, 3
    v_xor_b32 v4, v4, v5
    v_lshl_add_u32 v{G2HA}, v4, 4, v2
    v_add_u32 v{G2HA+1}, 0x10000, v{G2HA}
    v_bfe_u32 v4, v1, 2, 2               ; r
    v_and_b32 v5, 3, v1                  ; c
    v_bfe_u32 v6, v1, 4, 1               ; dhalf
    v_lshl_add_u32 v7, v3, 3, v4         ; 8hi + r
    s_lshl_b32 s53, s3, 4
    v_add_u32 v7, s53, v7                ; k = 16w+8hi+r
    v_lshlrev_b32 v7, 7, v7
    v_add_u32 v7, 8192, v7
    v_and_b32 v8, 1, v5
    v_lshl_add_u32 v7, v8, 3, v7
    v_lshrrev_b32 v8, 1, v5
    v_lshl_add_u32 v8, v6, 1, v8         ; 2dhalf + (c>>1)
    v_lshrrev_b32 v9, 1, v4
    v_lshlrev_b32 v9, 2, v9              ; (r>>1)<<2
    v_xor_b32 v10, v8, v9
    v_lshl_add_u32 v{G2WA}, v10, 4, v7
    v_xor_b32 v10, 4, v10
    v_lshl_add_u32 v{G2WA+2}, v10, 4, v7
    v_add_u32 v{G2WA+1}, 0x10000, v{G2WA}
    v_add_u32 v{G2WA+3}, 0x10000, v{G2WA+2}
    v_and_b32 v11, 15, v1
    s_lshl_b32 s53, s3, 4
    v_add_u32 v11, s53, v11              ; s local
    v_add_u32 v12, s55, v11              ; s global
    v_lshrrev_b32 v13, 4, v1             ; gq
    v_lshlrev_b32 v14, 10, v12
    v_lshl_add_u32 v14, v13, 4, v14      ; s*1024 + gq*16
    v_lshlrev_b32 v15, 2, v12
    s_mov_b32 s57, {G_OFF}
    buffer_load_dwordx4 v[16:19], v14, s[{S2_Q}:{S2_Q+3}], s56 offen
    buffer_load_dwordx4 v[20:23], v14, s[{S2_Q}:{S2_Q+3}], s56 offen offset:64
    buffer_load_dword v24, v15, s[{S2_WS}:{S2_WS+3}], s57 offen {hsc}
    """)
    q = []
    for c in range(4): q += [c]*4
    q += ['x']*(3+npf)
    def wait_for(c):
        last = max(i for i, t in enumerate(q) if t == c)
        return len(q) - 1 - last
    NC = 28
    for c in range(NC):
        a(f"s_waitcnt vmcnt({wait_for(c)}) lgkmcnt(0)")
        a("s_barrier")
        if c == 0: stamp(a, 1)
        if c == 14: stamp(a, 2)
        if c + 4 < NC:
            g2_issue(a, c+4, (c+4) % NSL, hsc); q += [c+4]*4
        g2_reads(a, c % NSL, c & 1)
        if c > 0: g2_mfma(a, (c-1) & 1, c == 1)
    a("s_waitcnt lgkmcnt(0)")
    a("s_barrier")
    g2_mfma(a, (NC-1) & 1, False)
    stamp(a, 3)
    lp = a.newlabel("G2POLL"); dn = a.newlabel("G2GO")
    a(f"""
    s_cmp_lg_u32 s3, 0
    s_cbranch_scc1 {dn}
    s_lshl_b32 s53, s61, 3
    s_add_u32 s53, s53, s58
    s_lshl_b32 s53, s53, 7
    s_add_u32 s53, s53, {F_OFF}
    v_and_b32 v25, 31, v1
    v_lshlrev_b32 v25, 2, v25
    s_mov_b32 s62, 0
    """)
    if 'nopoll' in EXP: a(f"s_branch {dn}")
    a.label(lp)
    a(f"""
    buffer_load_dword v26, v25, s[{S2_WS}:{S2_WS+3}], s53 offen sc1
    s_waitcnt vmcnt(0)
    v_cmp_ne_u32 vcc, 0, v26
    s_add_u32 s62, s62, 1
    s_cmp_eq_u64 vcc, -1
    s_cbranch_scc1 {dn}
    s_cmp_ge_u32 s62, 0x10000
    s_cbranch_scc1 {dn}
    s_sleep {SLEEP[0]}
    s_branch {lp}
    """)
    a.label(dn)
    a("s_barrier")
    stamp(a, 4)
    a(f"""
    v_lshrrev_b32 v2, 3, v0
    v_and_b32 v3, 7, v0
    v_lshlrev_b32 v4, 12, v2             ; row*4096
    v_lshl_add_u32 v4, v3, 4, v4
    s_lshl_b32 s53, s56, 11              ; d0*4096 = (d0*2)*2048
    s_lshl_b32 s62, s55, 1
    s_add_u32 s53, s53, s62
    s_add_u32 s53, s53, {Y2_OFF}
    s_add_u32 s62, s53, {32*4096}
    buffer_load_dwordx4 v[28:31], v4, s[{S2_WS}:{S2_WS+3}], s53 offen sc1
    buffer_load_dwordx4 v[32:35], v4, s[{S2_WS}:{S2_WS+3}], s62 offen sc1
    v_mul_u32_u24 v5, {Y2PITCH}, v2
    v_lshl_add_u32 v5, v3, 4, v5
    v_add_u32 v5, {Y2L}, v5
    v_and_b32 v6, 31, v1
    v_mul_u32_u24 v6, {PART_PITCH}, v6
    v_lshrrev_b32 v7, 5, v1
    v_lshl_add_u32 v6, v7, 4, v6
    s_mul_i32 s53, s3, {PART_SZ}
    v_add_u32 v6, s53, v6
    s_nop 7
    """)
    for dt in range(2):
        for st in range(2):
            ac = G2ACC + 16*(2*dt+st)
            for qq in range(4):
                a(f"ds_write_b128 v6, v[{ac+4*qq}:{ac+4*qq+3}] offset:{st*32*PART_PITCH + dt*128 + qq*32}")
    a(f"""
    s_waitcnt vmcnt(0)
    ds_write_b128 v5, v[28:31]
    ds_write_b128 v5, v[32:35] offset:{32*Y2PITCH}
    s_waitcnt lgkmcnt(0)
    s_barrier
    v_mul_u32_u24 v6, {PART_PITCH}, v11
    v_lshl_add_u32 v6, v13, 5, v6
    v_bfe_u32 v7, v1, 2, 2               ; r
    v_lshl_add_u32 v7, v13, 3, v7        ; 8gq + r
    v_mul_u32_u24 v7, {Y2PITCH}, v7
    v_and_b32 v8, 3, v1
    v_lshl_add_u32 v7, v8, 3, v7
    s_lshl_b32 s53, s3, 5
    s_add_u32 s53, s53, {Y2L}
    v_add_u32 v7, s53, v7
    """)
    for it in range(2):
        B = 64 + it*40
        for p in range(4):
            for hh in range(2):
                a(f"ds_read_b128 v[{B+8*p+4*hh}:{B+8*p+4*hh+3}], v6 offset:{p*PART_SZ + it*128 + hh*16}")
        for kk in range(2):
            a(f"ds_read_b64_tr_b16 v[{B+32+2*kk}:{B+33+2*kk}], v7 offset:{(it*32+kk*4)*Y2PITCH}")
    a("""v_sub_f32 v25, 1.0, v24
         v_cvt_pk_bf16_f32 v25, v25, v25
         v_lshlrev_b32 v25, 16, v25      ; omg""")
    for it in range(2):
        B = 64 + it*40
        a(f"s_waitcnt lgkmcnt({10 if it == 0 else 0})")
        for j in range(8):
            a(f"v_add_f32 v{B+j}, v{B+j}, v{B+8+j}")
            a(f"v_add_f32 v{B+16+j}, v{B+16+j}, v{B+24+j}")
        for j in range(8):
            a(f"v_add_f32 v{B+j}, v{B+j}, v{B+16+j}")
        qr = 16 + 4*it
        o = 150 + 4*it
        for j in range(4):
            a(f"""v_cvt_pk_bf16_f32 v36, v{B+2*j}, v{B+2*j+1}
                  v_lshlrev_b32 v37, 16, v36
                  v_and_b32 v38, 0xffff0000, v36
                  v_mul_f32 v37, v25, v37
                  v_mul_f32 v38, v25, v38
                  v_cvt_pk_bf16_f32 v36, v37, v38
                  v_lshlrev_b32 v37, 16, v36
                  v_and_b32 v38, 0xffff0000, v36
                  v_lshlrev_b32 v39, 16, v{qr+j}
                  v_and_b32 v40, 0xffff0000, v{qr+j}
                  v_lshlrev_b32 v41, 16, v{B+32+j}
                  v_and_b32 v42, 0xffff0000, v{B+32+j}
                  v_mul_f32 v39, v39, v41
                  v_mul_f32 v40, v40, v42
                  v_cvt_pk_bf16_f32 v39, v39, v40
                  v_lshlrev_b32 v41, 16, v39
                  v_and_b32 v42, 0xffff0000, v39
                  v_mul_f32 v41, v24, v41
                  v_mul_f32 v42, v24, v42
                  v_cvt_pk_bf16_f32 v39, v41, v42
                  v_lshlrev_b32 v41, 16, v39
                  v_and_b32 v42, 0xffff0000, v39
                  v_add_f32 v37, v37, v41
                  v_add_f32 v38, v38, v42
                  v_cvt_pk_bf16_f32 v{o+j}, v37, v38""")
        a(f"buffer_store_dwordx4 v[{o}:{o+3}], v14, s[{S2_OUT}:{S2_OUT+3}], s56 offen offset:{it*64}")

CH_SZ = 21248
P_PITCH = 4160
U_OFF = 16640
XB = 2*CH_SZ
CA = 64
CACC = 192

def conv_loads(a, it, buf):
    L = []
    A = CA + 64*buf; Z = A + 32
    for i in range(8):
        L.append(f"ds_read_b64_tr_b16 v[{A+4*i}:{A+4*i+1}], v10 offset:{512*i + 8 + 64*it}")
        L.append(f"ds_read_b64_tr_b16 v[{A+4*i+2}:{A+4*i+3}], v10 offset:{512*i + 64*it}")
        L.append(f"ds_read_b128 v[{Z+4*i}:{Z+4*i+3}], v11 offset:{512*i + 192 - 64*it}")
    return L

def gen_conv(a, usc=""):
    a(f"""
    v_and_b32 v1, 63, v0
    s_lshr_b32 s51, s3, 1                ; ch
    s_and_b32 s52, s3, 1                 ; half
    s_lshl_b32 s53, s2, 1
    s_add_u32 s53, s53, s51              ; channel d
    s_lshl_b32 s55, s53, 12              ; d*4096
    s_mul_i32 s56, s51, {CH_SZ}          ; CB
    v_lshlrev_b32 v2, 4, v1              ; l*16
    s_lshl_b32 s57, s52, 11
    s_add_u32 s58, s55, s57
    v_add_u32 v3, s58, v2
    v_subrev_u32 v4, 4, v3
    v_subrev_u32 v5, 8, v3
    buffer_load_dwordx4 v[16:19], v3, s[{S2_SK}:{S2_SK+3}], 0 offen
    buffer_load_dwordx4 v[20:23], v4, s[{S2_SK}:{S2_SK+3}], 0 offen
    buffer_load_dwordx4 v[24:27], v5, s[{S2_SK}:{S2_SK+3}], 0 offen
    v_add_u32 v4, 1024, v4
    v_add_u32 v5, 1024, v5
    buffer_load_dwordx4 v[28:31], v3, s[{S2_SK}:{S2_SK+3}], 0 offen offset:1024
    buffer_load_dwordx4 v[32:35], v4, s[{S2_SK}:{S2_SK+3}], 0 offen
    buffer_load_dwordx4 v[36:39], v5, s[{S2_SK}:{S2_SK+3}], 0 offen
    s_lshl_b32 s59, s53, 1
    v_mov_b32 v6, s59
    buffer_load_ushort v40, v6, s[{S2_SD}:{S2_SD+3}], 0 offen
    ; u DMA
    s_add_u32 s59, s56, s57
    s_add_u32 m0, s59, {U_OFF+512}
    s_add_u32 s60, s58, {UT_OFF}
    buffer_load_dwordx4 v2, s[{S2_WS}:{S2_WS+3}], s60 offen lds {usc}
    s_add_u32 m0, s59, {U_OFF+512+1024}
    s_add_u32 s60, s60, 1024
    buffer_load_dwordx4 v2, s[{S2_WS}:{S2_WS+3}], s60 offen lds {usc}
    v_mov_b32 v44, 0
    v_mov_b32 v45, 0
    v_mov_b32 v46, 0
    v_mov_b32 v47, 0
    v_add_u32 v7, {U_OFF}, v2
    v_subrev_u32 v8, 32, v1              ; l-32
    v_lshrrev_b32 v9, 2, v8              ; copy r
    v_mul_u32_u24 v9, {P_PITCH}, v9
    v_and_b32 v8, 3, v8
    v_lshl_add_u32 v9, v8, 4, v9
    v_cmp_gt_u32 vcc, 32, v1
    s_nop 1
    v_cndmask_b32 v7, v9, v7, vcc
    v_add_u32 v7, s56, v7
    v_cmp_gt_u32 vcc, 48, v1
    s_and_saveexec_b64 s[62:63], vcc
    ds_write_b128 v7, v[44:47]
    s_mov_b64 exec, s[62:63]
    v_lshrrev_b32 v12, 4, v1             ; g
    v_bfe_u32 v13, v1, 2, 2              ; r
    v_and_b32 v14, 3, v1                 ; cc
    v_lshrrev_b32 v15, 1, v12            ; g>>1
    v_and_b32 v41, 1, v12                ; g&1
    v_lshlrev_b32 v42, 5, v15            ; 32(g>>1)
    v_lshlrev_b32 v43, 4, v41            ; 16(g&1)
    v_mul_u32_u24 v10, {P_PITCH}, v13
    v_add_u32 v10, v10, v42
    v_sub_u32 v10, v10, v43
    v_lshl_add_u32 v10, v14, 3, v10
    s_lshl_b32 s59, s52, 8               ; 64*4*half
    s_add_u32 s60, s56, s59
    s_add_u32 s60, s60, {64-8}
    v_add_u32 v10, s60, v10              ; A addr
    v_and_b32 v11, 15, v1
    v_lshlrev_b32 v11, 5, v11            ; 32n
    v_sub_u32 v11, v11, v42
    v_add_u32 v11, v11, v43
    s_sub_u32 s60, s56, s59
    s_add_u32 s60, s60, {U_OFF+512-192}
    v_add_u32 v11, s60, v11              ; Z addr
    s_add_u32 s60, s56, s57
    s_add_u32 s60, s60, 64
    v_add_u32 v9, s60, v2
    v_or_b32 v8, s52, v1
    v_cmp_eq_u32 vcc, 0, v8
    s_waitcnt vmcnt(3)
    v_cndmask_b32 v20, v20, 0, vcc
    v_cndmask_b32 v24, v24, 0, vcc
    v_cndmask_b32 v25, v25, 0, vcc
    """)
    a.lines = [ln.replace("v_cndmask_b32 v20, v20, 0, vcc", "v_cndmask_b32 v20, v20, v44, vcc")
                 .replace("v_cndmask_b32 v24, v24, 0, vcc", "v_cndmask_b32 v24, v24, v44, vcc")
                 .replace("v_cndmask_b32 v25, v25, 0, vcc", "v_cndmask_b32 v25, v25, v44, vcc") for ln in a.lines]
    for it in range(2):
        W, X, Zr = 16+12*it, 20+12*it, 24+12*it
        if it == 1: a("s_waitcnt vmcnt(3)")
        for j in range(4):
            a(f"v_alignbit_b32 v{48+j}, v{W+j}, v{X+j}, 16")
            a(f"v_alignbit_b32 v{52+j}, v{X+j}, v{Zr+j}, 16")
        a(f"ds_write_b128 v9, v[{W}:{W+3}] offset:{it*1024}")
        a(f"ds_write_b128 v9, v[48:51] offset:{P_PITCH + it*1024}")
        a(f"ds_write_b128 v9, v[{X}:{X+3}] offset:{2*P_PITCH + it*1024}")
        a(f"ds_write_b128 v9, v[52:55] offset:{3*P_PITCH + it*1024}")
        if it == 0: a("s_nop 2")
    a("s_waitcnt vmcnt(0) lgkmcnt(0)")
    a("s_barrier")
    stamp(a, 1)
    if STAMP[0]: a("s_memtime s[90:91]\n s_waitcnt lgkmcnt(0)\n s_mov_b32 s96, s90")
    for ln in conv_loads(a, 0, 0): a(ln)
    pairs = [(i, c-i) for c in range(8) for i in range(c+1)]
    for it in range(4):
        a("s_waitcnt lgkmcnt(0)")
        nxt = conv_loads(a, it+1, (it+1) & 1) if it < 3 else []
        A = CA + 64*(it & 1); Z = A + 32
        seen = set()
        for n, (i, cp) in enumerate(pairs):
            c = i + cp
            ac = CACC + 4*c
            cc = "0" if (it == 0 and c not in seen) else f"v[{ac}:{ac+3}]"
            seen.add(c)
            a(f"v_mfma_f32_16x16x32_bf16 v[{ac}:{ac+3}], v[{A+4*i}:{A+4*i+3}], v[{Z+4*cp}:{Z+4*cp+3}], {cc}")
            if n % 3 == 2 and nxt:
                a(nxt.pop(0)); a(nxt.pop(0))
    stamp(a, 2)
    if STAMP[0]: a("s_memtime s[90:91]\n s_waitcnt lgkmcnt(0)\n s_mov_b32 s97, s90")
    a(f"""
    s_nop 15
    s_lshl_b32 s59, s3, 12
    s_add_u32 s59, s59, {XB}
    v_add_u32 v12, s59, v2
    s_xor_b32 s60, s3, 1
    s_lshl_b32 s60, s60, 12
    s_add_u32 s60, s60, {XB}
    v_add_u32 v13, s60, v2
    s_cmp_eq_u32 s52, 0
    """)
    l1 = a.newlabel("CVH1"); l2 = a.newlabel("CVJ")
    a(f"s_cbranch_scc0 {l1}")
    for t in range(4): a(f"ds_write_b128 v12, v[{CACC+16+4*t}:{CACC+16+4*t+3}] offset:{t*1024}")
    for t in range(16): a(f"v_mov_b32 v{64+t}, v{CACC+t}")
    a(f"s_branch {l2}")
    a.label(l1)
    for t in range(4): a(f"ds_write_b128 v12, v[{CACC+4*t}:{CACC+4*t+3}] offset:{t*1024}")
    for t in range(16): a(f"v_mov_b32 v{64+t}, v{CACC+16+t}")
    a.label(l2)
    a(f"""
    v_and_b32 v14, 15, v1
    v_lshlrev_b32 v14, 5, v14            ; 32n
    v_lshrrev_b32 v15, 4, v1
    v_lshl_add_u32 v14, v15, 3, v14
    s_lshl_b32 s59, s52, 11              ; half*4*512
    s_add_u32 s60, s56, s59
    s_add_u32 s60, s60, {U_OFF+512}
    v_add_u32 v15, s60, v14
    s_add_u32 s60, s55, s59
    s_add_u32 s60, s60, {Y2_OFF}
    s_waitcnt lgkmcnt(0)
    s_barrier
    """)
    for t in range(4):
        a(f"ds_read_b128 v[{80+4*t}:{83+4*t}], v13 offset:{t*1024}")
        a(f"ds_read_b64 v[{96+2*t}:{97+2*t}], v15 offset:{t*512}")
    a("v_lshlrev_b32 v40, 16, v40")
    a("s_waitcnt lgkmcnt(0)")
    for t in range(4):
        for j in range(4): a(f"v_add_f32 v{64+4*t+j}, v{64+4*t+j}, v{80+4*t+j}")
        for j in range(2):
            y0, y1 = 64+4*t+2*j, 64+4*t+2*j+1
            u = 96+2*t+j
            a(f"""v_cvt_pk_bf16_f32 v104, v{y0}, v{y1}
                  v_lshlrev_b32 v105, 16, v104
                  v_and_b32 v106, 0xffff0000, v104
                  v_lshlrev_b32 v107, 16, v{u}
                  v_and_b32 v108, 0xffff0000, v{u}
                  v_mul_f32 v107, v40, v107
                  v_mul_f32 v108, v40, v108
                  v_cvt_pk_bf16_f32 v104, v107, v108
                  v_lshlrev_b32 v107, 16, v104
                  v_and_b32 v108, 0xffff0000, v104
                  v_add_f32 v105, v105, v107
                  v_add_f32 v106, v106, v108
                  v_cvt_pk_bf16_f32 v{110+2*t+j}, v105, v106""")
        a(f"buffer_store_dwordx2 v[{110+2*t}:{111+2*t}], v14, s[{S2_WS}:{S2_WS+3}], s60 offen offset:{t*512} {'' if 'nosc1st' in EXP else 'sc1'}")
    a(f"""
    s_waitcnt vmcnt(0)
    s_barrier
    s_lshr_b32 s59, s2, 5                ; cb = j>>5
    s_lshl_b32 s59, s59, 10              ; cb*8*128
    s_and_b32 s60, s2, 31
    s_lshl_b32 s60, s60, 2
    s_add_u32 s59, s59, s60
    s_add_u32 s59, s59, {F_OFF}
    v_lshlrev_b32 v2, 7, v0
    v_mov_b32 v3, 1
    v_cmp_gt_u32 vcc, 8, v0
    s_and_saveexec_b64 s[62:63], vcc
    s_cbranch_execz CV_END
    buffer_store_dword v3, v2, s[{S2_WS}:{S2_WS+3}], s59 offen sc1
    """)
    a.label("CV_END")
    a("s_mov_b64 exec, -1")
    stamp(a, 3)
    stamp_flush(a, S2_WS, TS_OFF + 65536 + 8192, 6)

def gen_k2(a):
    a.label("k2_kernel")
    a("s_cmp_ge_u32 s2, 512")
    a("s_cbranch_scc1 K2_END")
    prologue_ptrs(a)
    a("""v_lshrrev_b32 v1, 6, v0
         s_nop 0
         v_readfirstlane_b32 s3, v1
         s_waitcnt lgkmcnt(0)""")
    srd(a, S2_H, 'ws', 2048*3584); srd(a, S2_W2, 'w2', 1792*1024); srd(a, S2_Q, 'q', MB2)
    srd(a, S2_OUT, 'out', MB2); srd(a, S2_WS, 'ws', WS_SZ); srd(a, S2_DBG, 'dbg', 256)
    srd(a, S2_SK, 'ssmk', MB2); srd(a, S2_SD, 'ssmD', 1024)
    a("s_cmp_ge_u32 s2, 256")
    a("s_cbranch_scc1 K2_CONV")
    gen_g2(a)
    a("s_waitcnt vmcnt(0)")
    stamp(a, 5)
    stamp_flush(a, S2_WS, TS_OFF + 65536, 6)
    a("s_endpgm")
    a.label("K2_CONV")
    a("s_sub_u32 s2, s2, 256")
    if PRIO[0]: a(f"s_setprio {PRIO[0]}")
    if 'remap' in EXP: a("s_xor_b32 s2, s2, 0x18")
    stamp(a, 0)
    gen_conv(a)
    a.label("K2_END")
    a("s_endpgm")

KD = """.p2align 6
.amdhsa_kernel {name}
  .amdhsa_next_free_vgpr {vgpr}
  .amdhsa_next_free_sgpr 102
  .amdhsa_accum_offset {acc}
  .amdhsa_group_segment_fixed_size 0
  .amdhsa_kernarg_size 104
  .amdhsa_user_sgpr_count 2
  .amdhsa_user_sgpr_kernarg_segment_ptr 1
  .amdhsa_system_sgpr_workgroup_id_x 1
.end_amdhsa_kernel
"""

def main(out):
    hdr = """; gated_mix: conv + FFN  (generated by dev/gen_k2.py)
; @launch kernel=k1_kernel grid=(256,1,1) block=(256,1,1) lds=131072
; @launch kernel=k2_kernel grid=(512,1,1) block=(256,1,1) lds=81920
.amdgcn_target "amdgcn-amd-amdhsa--gfx950"
.text
"""
    a = Asm()
    a.lines.append(".globl k1_kernel\n.p2align 8\n.type k1_kernel,@function")
    gen_k1(a)
    a.lines.append(".globl k2_kernel\n.p2align 8\n.type k2_kernel,@function")
    gen_k2(a)
    t = hdr + a.text() + '.section .rodata,"a"\n' + KD.format(name="k1_kernel", vgpr=240, acc=240) + KD.format(name="k2_kernel", vgpr=224, acc=224)
    open(out, "w").write(t)

if __name__ == "__main__":
    import sys
    if "stamp" in sys.argv: STAMP[0] = True
    if "pf" in sys.argv: PF[0] = True
    if "pfsc1" in sys.argv: PF[0] = True; PF[1] = "sc1"
    if "pfnt" in sys.argv: PF[0] = True; PF[1] = "nt"
    for x in sys.argv:
        if x.startswith('sleep='): SLEEP[0] = int(x[6:])
        if x.startswith('prio='): PRIO[0] = int(x[5:])
    for e in ('nopoll','nosc1st','remap'):
        if e in sys.argv: EXP.add(e)
    main(sys.argv[1] if len(sys.argv) > 1 else "v1.s")
```
